```python
import torch

def _softmax(x, axis=-1):
    return torch.softmax(x, dim=axis)
def _gelu(x):
    return torch.nn.functional.gelu(x, approximate="tanh")
def _silu(x):
    return torch.nn.functional.silu(x)
def _sigmoid(x):
    return torch.sigmoid(x)
def _layernorm(x, axis=-1, eps=1e-5):
    m = x.mean(dim=axis, keepdim=True)
    v = x.var(dim=axis, keepdim=True, unbiased=False)
    return (x - m) / torch.sqrt(v + eps)
def _scatter_add(tgt, idx, src, axis=0):
    return tgt.clone().index_add_(axis, idx, src)
def _segment_sum(src, seg, n):
    out = torch.zeros((n,) + src.shape[1:], dtype=src.dtype)
    return out.index_add_(0, seg, src)
def _pad(x, pw):
    flat = tuple(v for pair in reversed(pw) for v in pair)
    return torch.nn.functional.pad(x, flat)

kernel_name = 'interleave_layers__ssm_conv_h3__dense_activation_mish__prompt'

def setup_inputs():

    _w = (lambda a: (lambda t: t.to(torch.bfloat16) if t.is_floating_point() else t)(torch.as_tensor(a)))
    def _A_setup():
        B, S, D = 1, 2048, 512
        ks = 4
        return {
            "q": _w((lambda *s: torch.randn(*s, dtype=torch.bfloat16) * 0.05)(B, S, D)),
            "k": _w((lambda *s: torch.randn(*s, dtype=torch.bfloat16) * 0.2)(B, S, D)),
            "v": _w((lambda *s: torch.randn(*s, dtype=torch.bfloat16) * 0.2)(B, S, D)),
            "shift_k": _w((lambda *s: torch.randn(*s, dtype=torch.bfloat16) * 0.2)(D, ks) * 0.5),
            "ssm_k": _w((lambda *s: torch.randn(*s, dtype=torch.bfloat16) * 0.4)(D, S) * (1.0 / S ** 0.5)),
            "ssm_D": _w((lambda *s: torch.randn(*s, dtype=torch.bfloat16) * 0.2)(D)),
        }
    _A_in = _A_setup()

    def _B_setup():
        B, S, D, F = 1, 2048, 512, 1792
        return {
            "x": _w((lambda *s: torch.randn(*s, dtype=torch.bfloat16) * 0.05)(B, S, D)),
            "w1": _w((lambda *s: torch.randn(*s, dtype=torch.bfloat16) * 0.4)(D, F) * (D ** -0.5)),
            "b1": _w((lambda *s: torch.randn(*s, dtype=torch.bfloat16) * 0.1)(F)),
            "w2": _w((lambda *s: torch.randn(*s, dtype=torch.bfloat16) * 0.1)(F, D) * (F ** -0.5)),
        }
    _B_in = _B_setup()

    return {
        "A_q": _A_in["q"],
        "A_k": _A_in["k"],
        "A_v": _A_in["v"],
        "A_shift_k": _A_in["shift_k"],
        "A_ssm_k": _A_in["ssm_k"],
        "A_ssm_D": _A_in["ssm_D"],
        "B_x": _B_in["x"],
        "B_w1": _B_in["w1"],
        "B_b1": _B_in["b1"],
        "B_w2": _B_in["w2"],
    }

def reference(A_q, A_k, A_v, A_shift_k, A_ssm_k, A_ssm_D, B_x, B_w1, B_b1, B_w2):
    def _A_ref(q, k, v, shift_k, ssm_k, ssm_D):
        B, S, D = q.shape
        ks = shift_k.shape[-1]
        k_pad = _pad(k, ((0, 0), (ks - 1, 0), (0, 0)))
        k_shift = torch.zeros_like(k)
        for t in range(ks):
            k_shift = k_shift + k_pad[:, t:t + S, :] * shift_k[:, ks - 1 - t][None, None, :]
        kv = k_shift * v
        L = 2 * S
        kv_pad = _pad(kv, ((0, 0), (0, S), (0, 0)))
        kf_pad = _pad(ssm_k, ((0, 0), (0, S)))
        kv_f = (lambda x, axes=(-2,-1): torch.fft.rfft2(x.float(), dim=axes))(kv_pad[:, None, :, :], axes=(1, 2))
        kf_f = (lambda x, axes=(-2,-1): torch.fft.rfft2(x.float(), dim=axes))(kf_pad[:, None, :], axes=(1, 2))
        kf_f = (lambda x, *d: x.permute(*d))(kf_f, 1, 2, 0)
        y_f = kv_f * kf_f[None, :, :, :]
        y = (lambda x, s, axes=(-2,-1): torch.fft.irfft2(x, s=s, dim=axes).to(torch.bfloat16))(y_f, (1, L), axes=(1, 2))[:, 0, :S, :]
        y = y + kv * ssm_D[None, None, :]
        return q * y

    def _B_ref(x, w1, b1, w2):
        h = torch.einsum("bsd,df->bsf", x, w1) + b1
        sp = torch.log1p(torch.exp(-torch.abs(h))) + torch.where(h > 0, h, torch.zeros_like(h))
        act = h * torch.tanh(sp)
        return torch.einsum("bsf,fd->bsd", act, w2)

    x = A_q
    x = x + _A_ref(_layernorm(x, axis=-1), A_k, A_v, A_shift_k, A_ssm_k, A_ssm_D)
    x = x + _B_ref(_layernorm(x, axis=-1), B_w1, B_b1, B_w2)
    x = x + _A_ref(_layernorm(x, axis=-1), A_k, A_v, A_shift_k, A_ssm_k, A_ssm_D)
    x = x + _B_ref(_layernorm(x, axis=-1), B_w1, B_b1, B_w2)
    return x
```

```python
import re

TRANS = ("v_exp_f32", "v_log_f32", "v_rcp_f32", "v_rsq_f32", "v_sqrt_f32")
REG_RE = re.compile(r"\b([vas])\[(\d+):(\d+)\]|\b([vas])(\d+)\b|\b(vcc|exec|m0)\b")


def regs_of(tok):
    out = set()
    for m in REG_RE.finditer(tok):
        if m.group(1):
            for i in range(int(m.group(2)), int(m.group(3)) + 1):
                out.add(m.group(1) + str(i))
        elif m.group(4):
            out.add(m.group(4) + m.group(5))
        else:
            out.add(m.group(6))
    return out


class Ins:
    def __init__(self, text):
        self.text = text
        t = text.split(";")[0].strip()
        self.is_label = t.endswith(":")
        parts = t.split(None, 1)
        self.op = parts[0] if parts else ""
        rest = parts[1] if len(parts) > 1 else ""
        self.ops = [o.strip() for o in rest.split(",")] if rest else []
        op = self.op
        self.kind = "other"
        self.w = set()
        self.r = set()
        self.states = 1
        self.srcc = set()
        self.srcab = set()
        self.data = set()
        if self.is_label or not op:
            self.states = 0
            return
        allr = [regs_of(o) for o in self.ops]
        if op == "s_nop":
            self.states = int(self.ops[0]) + 1
            self.kind = "nop"
        elif op.startswith("v_mfma"):
            self.kind = "mfma"
            self.w = allr[0]
            self.srcab = allr[1] | allr[2]
            self.srcc = allr[3]
            self.r = self.srcab | self.srcc
        elif op.startswith("v_"):
            self.kind = "valu"
            if op.startswith("v_cmpx"):
                self.w = {"exec", "vcc"} | allr[0]
                self.r = set().union(*allr[1:])
            elif op.startswith("v_permlane") and "swap" in op:
                self.w = allr[0] | allr[1]
                self.r = allr[0] | allr[1]
            else:
                self.w = allr[0]
                self.r = set().union(*allr[1:]) if len(allr) > 1 else set()
                if op.startswith("v_cndmask") and len(self.ops) == 3:
                    self.r |= {"vcc"}
                if op.startswith("v_fmac") or op.startswith("v_dot2c") or "d16" in op:
                    self.r |= allr[0]
        elif op.startswith("buffer_") or op.startswith("global_"):
            self.kind = "vmem"
            lds = " lds" in (" " + rest)
            if "load" in op and not lds:
                self.w = allr[0]
                self.r = set().union(*allr[1:])
            else:
                self.r = set().union(*allr)
                if "store" in op:
                    self.data = allr[0]
            self.lds = lds
        elif op.startswith("ds_"):
            self.kind = "ds"
            if "read" in op:
                self.w = allr[0]
                self.r = set().union(*allr[1:])
            else:
                self.r = set().union(*allr)
        elif op.startswith("s_"):
            self.kind = "salu"
            if op.startswith(("s_cmp", "s_waitcnt", "s_barrier", "s_branch", "s_cbranch", "s_endpgm",
                              "s_setprio", "s_bitcmp")):
                self.r = set().union(*allr) if allr else set()
            elif allr:
                self.w = allr[0]
                self.r = set().union(*allr[1:]) if len(allr) > 1 else set()


def isv(r):
    return r[0] in "va" and r not in ("vcc",)


def iss(r):
    return (r[0] == "s") or r in ("vcc",)


def need(prod, cons):
    n = 0
    pw = prod.w
    if prod.kind == "valu":
        vw = {x for x in pw if isv(x)}
        sw = {x for x in pw if iss(x)}
        if cons.kind == "mfma" and vw & cons.r:
            n = max(n, 2)
        if cons.kind == "valu":
            if prod.op in TRANS and vw & cons.r:
                n = max(n, 1)
            if cons.op.startswith(("v_readfirstlane", "v_readlane")) and vw & cons.r:
                n = max(n, 1)
            if cons.op.startswith("v_permlane") and vw & cons.r:
                n = max(n, 2)
            if "dpp" in cons.text and vw & cons.r:
                n = max(n, 2)
            if sw & cons.r:
                n = max(n, 2)
            if "exec" in pw and cons.op.startswith(("v_readfirstlane", "v_readlane", "v_permlane")):
                n = max(n, 4)
            if prod.op.startswith("v_dot2") and vw & (cons.r | cons.w):
                same = prod.op == cons.op
                if not same or vw & set().union(*[regs_of(o) for o in cons.ops[1:3]]):
                    n = max(n, 3)
        if cons.kind in ("vmem", "ds"):
            if sw & cons.r:
                n = max(n, 5)
            if "exec" in pw:
                n = max(n, 5)
            if prod.op.startswith("v_dot2") and vw & cons.r:
                n = max(n, 3)
    elif prod.kind == "mfma":
        if cons.kind == "mfma":
            if pw & cons.srcab:
                n = max(n, 8)
            if pw & cons.srcc and pw != cons.srcc:
                n = max(n, 6)
            if pw & cons.w and pw != cons.srcc and not (pw & cons.srcc):
                n = max(n, 6)
        elif cons.kind == "valu":
            if pw & (cons.r | cons.w):
                n = max(n, 8)
            if prod.srcc & cons.w:
                n = max(n, 3)
        elif cons.kind in ("vmem", "ds"):
            if pw & (cons.r | cons.w):
                n = max(n, 8)
    elif prod.kind == "vmem":
        if prod.data and len(prod.data) >= 3:
            if cons.kind == "valu" and prod.data & cons.w:
                n = max(n, 2)
            elif prod.data & cons.w:
                n = max(n, 1)
    elif prod.kind == "salu":
        if "m0" in pw and cons.kind == "vmem" and getattr(cons, "lds", False):
            n = max(n, 1)
    return n


class Emit:
    def __init__(self):
        self.lines = []
        self.nlab = 0

    def __call__(self, s):
        for l in s.strip("\n").split("\n"):
            l = l.strip()
            if l:
                self.lines.append(l)

    def label(self, name):
        self.lines.append(name + ":")

    def newlabel(self, base="L"):
        self.nlab += 1
        return f"{base}_{self.nlab}"

    def finish(self):
        out = []
        hist = []
        nops = 0
        for l in self.lines:
            ins = Ins(l)
            if ins.is_label or not ins.op or l.startswith(";"):
                out.append(l if ins.is_label else "    " + l)
                continue
            req = 0
            dist = 0
            for p in reversed(hist):
                if dist >= 9:
                    break
                k = need(p, ins)
                if k > dist:
                    req = max(req, k - dist)
                dist += p.states
            if req > 0:
                nop = Ins(f"s_nop {req - 1}")
                out.append(f"    s_nop {req - 1}")
                hist.append(nop)
                nops += 1
            out.append("    " + l)
            hist.append(ins)
            if len(hist) > 24:
                hist = hist[-24:]
        self.nops = nops
        return "\n".join(out)
```

```python
import sys
from emit import Emit

KNAME = "interleave_layers__ssm_conv_h3__dense_activation_mish__prompt_kernel"
REF = "interleave_layers__ssm_conv_h3__dense_activation_mish__prompt.s.ref"

WS_FLAG = 0x1000
WS_PROF = 0x3A000
WS_KVT = 0x40000
WS_YP = 0x240000
WS_ST = 0x440000
WS_TAB = 0x4C0000
WS_XF = 0x500000
WS_ACT = 0x900000
WS_END = 0x1700000
ACT_ROUND = 0x700000
L_S = 114688
L_U = L_S
L_RED = L_S + 9216
L_MODE = L_S + 41984
LDS_BYTES = 163840
NONCE_STEP = 0x9E3779B0
LOG2E = 0x3FB8AA3B
LN2 = 0x3F317218
M2LN2 = 0xBFB17218
SPIN = 30000

WS, Q, K, V, SK, W1, W2, OUT, SH, DD, B1 = ("s[8:11]", "s[12:15]", "s[16:19]", "s[20:23]", "s[24:27]", "s[28:31]",
                                            "s[32:35]", "s[36:39]", "s[40:43]", "s[44:47]", "s[48:51]")
sW, sG, sR, sNONCE, sMODE = "s3", "s4", "s5", "s6", "s7"
sXCC, sTEAM, sM, sTBX, sCGX, sRND, sLIM, sTH = "s52", "s53", "s54", "s55", "s56", "s57", "s58", "s59"
sP = "s64"


def vr(a, n):
    return f"v[{a}:{a + n - 1}]" if n > 1 else f"v{a}"


def ar(a, n):
    return f"a[{a}:{a + n - 1}]" if n > 1 else f"a{a}"


class Gen:
    def __init__(self, prof=False, stop=None):
        self.e = Emit()
        self.prof = prof
        self.stop = stop
        self.nst = 0

    def stamp(self, i):
        if self.prof:
            self.e(f"s_memrealtime s[100:101]\ns_waitcnt lgkmcnt(0)\ns_mov_b32 s{80 + i}, s100")

    def flag_set(self, phase_off_sreg, val, always_sc1):
        e = self.e
        L = e.newlabel("L_nf")
        e(f"s_cmp_eq_u32 {sW}, 0\ns_cbranch_scc0 {L}")
        e(f"s_lshl_b32 s60, s2, 7\ns_add_u32 s60, s60, {phase_off_sreg}")
        e(f"v_mov_b32 v5, {val}\ns_mov_b64 exec, 1")
        if always_sc1:
            e(f"buffer_store_dword v5, off, {WS}, s60 sc1")
        else:
            self.dual([f"buffer_store_dword v5, off, {WS}, s60"])
        e("s_mov_b64 exec, -1")
        e.label(L)

    def dual(self, stores):
        e = self.e
        Lf, Ld = e.newlabel("L_fast"), e.newlabel("L_done")
        e(f"s_cmp_eq_u32 {sMODE}, 1\ns_cbranch_scc1 {Lf}")
        for s in stores:
            e(s + " sc1")
        e(f"s_branch {Ld}")
        e.label(Lf)
        for s in stores:
            e(s)
        e.label(Ld)

    def poll(self, cnt, expected, s0=False):
        e = self.e
        Ls, Lp, Lo, Lt = e.newlabel("L_skip"), e.newlabel("L_poll"), e.newlabel("L_ok"), e.newlabel("L_to")
        e(f"s_cmp_eq_u32 {sW}, 0\ns_cbranch_scc0 {Ls}")
        e(f"v_lshlrev_b32 v5, 10, v0\ns_mov_b32 exec_lo, {hex((1 << cnt) - 1)}\ns_mov_b32 exec_hi, 0\ns_mov_b32 s62, 0")
        e.label(Lp)
        e(f"buffer_load_dword v6, v5, {WS}, s61 offen sc1")
        e(f"s_add_u32 s62, s62, 1\ns_cmp_gt_u32 s62, {sLIM}\ns_cbranch_scc1 {Lt}")
        e("s_waitcnt vmcnt(0)")
        if s0:
            e(f"v_subrev_u32 v7, {expected}, v6\nv_cmp_le_u32 vcc, 16, v7")
        else:
            e(f"v_cmp_ne_u32 vcc, {expected}, v6")
        e(f"s_cmp_eq_u64 vcc, 0\ns_cbranch_scc0 {Lp}\ns_branch {Lo}")
        e.label(Lt)
        e(f"s_mov_b32 {sLIM}, 0\ns_waitcnt vmcnt(0)")
        e.label(Lo)
        if s0:
            e(f"v_subrev_u32 v7, {expected}, v6\nv_cmp_ne_u32 vcc, {sXCC}, v7")
            e(f"s_cmp_eq_u64 vcc, 0\ns_cselect_b32 s62, 1, 0\ns_mov_b64 exec, -1")
            e(f"v_mov_b32 v5, {L_MODE}\nv_mov_b32 v6, s62\nds_write_b32 v5, v6\ns_waitcnt lgkmcnt(0)")
        else:
            e("s_mov_b64 exec, -1")
        e.label(Ls)
        e("s_barrier")

    def xreduce(self, va, vt):
        e = self.e
        for sw in ("v_permlane16_swap_b32", "v_permlane32_swap_b32"):
            e(f"v_mov_b32 v{vt}, v{va}\nv_mov_b32 v{vt + 1}, v{va + 1}")
            e(f"{sw} v{va}, v{vt}\n{sw} v{va + 1}, v{vt + 1}")
            e(f"v_pk_add_f32 {vr(va, 2)}, {vr(va, 2)}, {vr(vt, 2)}")

    def stats_partial(self, vx, vo, vt):
        e = self.e
        e(f"v_pk_add_f32 {vr(vt, 2)}, {vr(vx, 2)}, {vr(vx + 2, 2)}")
        e(f"v_pk_mul_f32 {vr(vt + 2, 2)}, {vr(vx, 2)}, {vr(vx, 2)}")
        e(f"v_pk_fma_f32 {vr(vt + 2, 2)}, {vr(vx + 2, 2)}, {vr(vx + 2, 2)}, {vr(vt + 2, 2)}")
        for i in range(4, 16, 2):
            e(f"v_pk_add_f32 {vr(vt, 2)}, {vr(vt, 2)}, {vr(vx + i, 2)}")
            e(f"v_pk_fma_f32 {vr(vt + 2, 2)}, {vr(vx + i, 2)}, {vr(vx + i, 2)}, {vr(vt + 2, 2)}")
        e(f"v_add_f32 v{vo}, v{vt}, v{vt + 1}\nv_add_f32 v{vo + 1}, v{vt + 2}, v{vt + 3}")
        self.xreduce(vo, vt)

    def stats_final(self, vp, vo, scale=None):
        e = self.e
        for i in range(4):
            e(f"v_pk_add_f32 {vr(vp + 4 * i, 2)}, {vr(vp + 4 * i, 2)}, {vr(vp + 4 * i + 2, 2)}")
        e(f"v_pk_add_f32 {vr(vp, 2)}, {vr(vp, 2)}, {vr(vp + 4, 2)}")
        e(f"v_pk_add_f32 {vr(vp + 8, 2)}, {vr(vp + 8, 2)}, {vr(vp + 12, 2)}")
        e(f"v_pk_add_f32 {vr(vp, 2)}, {vr(vp, 2)}, {vr(vp + 8, 2)}")
        e(f"v_mul_f32 v{vp}, 0x3b000000, v{vp}\nv_mul_f32 v{vp + 1}, 0x3b000000, v{vp + 1}")
        e(f"v_fma_f32 v{vp + 1}, -v{vp}, v{vp}, v{vp + 1}")
        e(f"v_max_f32 v{vp + 1}, 0, v{vp + 1}\nv_add_f32 v{vp + 1}, 0x3727c5ac, v{vp + 1}")
        e(f"v_rsq_f32 v{vo}, v{vp + 1}")
        if scale is not None:
            e(f"v_mul_f32 v{vo}, {hex(scale)}, v{vo}")
        e(f"v_mul_f32 v{vo + 1}, -v{vp}, v{vo}")

    def stop_here(self, name):
        if self.stop == name:
            self.e("s_waitcnt vmcnt(0) lgkmcnt(0)\ns_branch L_fin")
            return True
        return False

    def prologue(self):
        e = self.e
        e("""
        s_cmp_ge_u32 s2, 256
        s_cbranch_scc1 L_end
        s_load_dwordx16 s[64:79], s[0:1], 0
        s_load_dwordx8 s[80:87], s[0:1], 64
        s_load_dwordx2 s[88:89], s[0:1], 96
        v_lshrrev_b32 v5, 6, v0
        v_and_b32 v0, 63, v0
        v_readfirstlane_b32 s3, v5
        v_lshlrev_b32 v1, 4, v0
        v_lshlrev_b32 v2, 3, v0
        v_and_b32 v3, 15, v0
        v_lshrrev_b32 v4, 4, v0
        s_and_b32 s4, s2, 7
        s_lshr_b32 s5, s2, 3
        s_getreg_b32 s52, hwreg(HW_REG_XCC_ID, 0, 4)
        s_lshr_b32 s60, s5, 4
        s_lshl_b32 s53, s4, 1
        s_add_u32 s53, s53, s60
        s_and_b32 s54, s5, 15
        s_lshr_b32 s60, s5, 3
        s_lshl_b32 s55, s4, 2
        s_add_u32 s55, s55, s60
        s_and_b32 s56, s5, 7
        s_lshr_b32 s59, s54, 3
        s_mov_b32 s57, 0
        s_mov_b32 s7, 0
        """)
        e(f"s_mov_b32 {sLIM}, {SPIN}")
        e("s_waitcnt lgkmcnt(0)")

        def srd(d, base, n):
            e(f"s_mov_b32 s{d}, s{base}\ns_and_b32 s{d + 1}, s{base + 1}, 0xffff\n"
              f"s_mov_b32 s{d + 2}, {n}\ns_mov_b32 s{d + 3}, 0x00020000")
        srd(8, 88, WS_END)
        srd(16, 66, 2097152)
        srd(20, 68, 2097152)
        srd(40, 70, 4096)
        srd(12, 64, 2097152)
        srd(44, 74, 1024)
        srd(24, 72, 2097152)
        srd(28, 78, 1835008)
        srd(32, 82, 1835008)
        srd(48, 80, 3584)
        srd(36, 84, 2097152)
        e(f"s_lshl_b32 {sP}, {sG}, 5\ns_add_u32 {sP}, {sP}, {sR}")
        self.stamp(0)

    def p0(self):
        e = self.e
        KC, KP, VV, SHR, QR, EP, DR = 176, 184, 188, 196, 200, 208, 209
        e(f"buffer_load_dword v{EP}, off, {WS}, 0 sc1")
        e(f"""
        v_and_b32 v5, 7, v0
        v_lshrrev_b32 v6, 3, v0
        s_lshl_b32 s60, {sR}, 16
        s_lshl_b32 s61, {sG}, 7
        s_add_u32 s60, s60, s61
        s_lshl_b32 s61, {sW}, 5
        s_add_u32 s60, s60, s61
        v_lshlrev_b32 v7, 13, v6
        v_lshl_add_u32 v7, v5, 2, v7
        v_add_u32 v7, s60, v7
        v_subrev_u32 v8, 3072, v7
        s_movk_i32 s60, 4096
        """)
        for i in range(8):
            so = "0" if i < 4 else "s60"
            e(f"buffer_load_dword v{KC + i}, v7, {K}, {so} offen offset:{(i % 4) * 1024}")
        e(f"v_mov_b32 v{KP}, 0\nv_mov_b32 v{KP + 1}, 0\nv_mov_b32 v{KP + 2}, 0")
        e("v_cmpx_le_u32 vcc, 0x2000, v7")
        for i in range(3):
            e(f"buffer_load_dword v{KP + i}, v8, {K}, 0 offen offset:{i * 1024}")
        e("s_mov_b64 exec, -1")
        for i in range(8):
            so = "0" if i < 4 else "s60"
            e(f"buffer_load_dword v{VV + i}, v7, {V}, {so} offen offset:{(i % 4) * 1024}")
        e(f"""
        v_lshlrev_b32 v9, 4, v5
        s_lshl_b32 s61, {sG}, 9
        s_lshl_b32 s62, {sW}, 7
        s_add_u32 s61, s61, s62
        buffer_load_dwordx4 {vr(SHR, 4)}, v9, {SH}, s61 offen
        v_lshlrev_b32 v10, 10, v3
        v_lshl_add_u32 v10, v4, 3, v10
        s_lshl_b32 s61, {sTBX}, 16
        s_lshl_b32 s62, {sW}, 14
        s_add_u32 s61, s61, s62
        s_lshl_b32 s62, {sCGX}, 7
        s_add_u32 s65, s61, s62
        """)
        for c in range(4):
            e(f"buffer_load_dwordx2 {vr(QR + 2 * c, 2)}, v10, {Q}, s65 offen offset:{32 * c}")
        e(f"s_lshl_b32 s61, {sP}, 2\nbuffer_load_dword v{DR}, off, {DD}, s61")
        e(f"""
        v_lshrrev_b32 v11, 1, v4
        v_lshlrev_b32 v11, 4, v11
        v_and_b32 v12, 1, v4
        v_lshlrev_b32 v12, 3, v12
        v_sub_u32 v11, v11, v12
        v_add_u32 v11, v11, v3
        v_subrev_u32 v11, 7, v11
        v_and_b32 v12, 1, v11
        v_lshlrev_b32 v12, 1, v12
        s_lshr_b32 s61, {sW}, 1
        s_lshl_b32 s62, {sP}, 1
        s_add_u32 s61, s61, s62
        s_lshl_b32 s66, s61, 12
        s_and_b32 s67, {sW}, 1
        s_lshl_b32 s62, s67, 8
        s_add_u32 s62, s62, s66
        s_add_u32 s62, s62, 64
        v_and_b32 v13, -2, v11
        v_lshl_add_u32 v13, v13, 1, s62
        s_lshl_b32 s63, s67, 7
        v_add_u32 v15, s63, v11
        v_lshl_add_u32 v14, v15, 1, s66
        """)
        SP = 244
        for j in range(8):
            e(f"v_mov_b32 v{SP + j}, 0")
        for j in range(7, -1, -1):
            e(f"v_add_u32 v240, {2 * j}, v14")
            e(f"v_cmpx_le_i32 vcc, {-j}, v15")
            e(f"buffer_load_ushort v{SP + j}, v240, {SK}, 0 offen")
        e("s_mov_b64 exec, -1")

        def tap(n):
            i, cc = n // 4, n % 4
            off = 512 * i + 64 * cc - 64
            e(f"buffer_load_dwordx4 {vr(16 + 4 * n, 4)}, v13, {SK}, 0 offen offset:{off}")
            e(f"buffer_load_dword v{144 + n}, v13, {SK}, 0 offen offset:{off + 16}")
        for n in range(1, 15):
            tap(n)
        e("s_waitcnt vmcnt(36)")
        for m_ in range(4):
            d = SHR + (m_ >> 1)
            if m_ & 1:
                e(f"v_and_b32 v{210 + 2 * m_}, 0xffff0000, v{d}\nv_and_b32 v{211 + 2 * m_}, 0xffff0000, v{d + 2}")
            else:
                e(f"v_lshlrev_b32 v{210 + 2 * m_}, 16, v{d}\nv_lshlrev_b32 v{211 + 2 * m_}, 16, v{d + 2}")
        for n in range(11):
            src = KP + n if n < 3 else KC + n - 3
            e(f"v_lshlrev_b32 v{218 + 2 * n}, 16, v{src}\nv_and_b32 v{219 + 2 * n}, 0xffff0000, v{src}")
        dstp = [176, 178, 180, 182, 184, 186, 240, 242]
        for i in range(8):
            t = dstp[i]
            e(f"v_pk_mul_f32 {vr(t, 2)}, {vr(218 + 2 * (i + 3), 2)}, {vr(210, 2)}")
            e(f"v_pk_fma_f32 {vr(t, 2)}, {vr(218 + 2 * (i + 2), 2)}, {vr(212, 2)}, {vr(t, 2)}")
            e(f"v_pk_fma_f32 {vr(t, 2)}, {vr(218 + 2 * (i + 1), 2)}, {vr(214, 2)}, {vr(t, 2)}")
            e(f"v_pk_fma_f32 {vr(t, 2)}, {vr(218 + 2 * i, 2)}, {vr(216, 2)}, {vr(t, 2)}")
            e(f"v_lshlrev_b32 v252, 16, v{VV + i}\nv_and_b32 v253, 0xffff0000, v{VV + i}")
            e(f"v_pk_mul_f32 {vr(t, 2)}, {vr(t, 2)}, v[252:253]")
        for j in range(4):
            e(f"v_cvt_pk_bf16_f32 v{220 + j}, v{dstp[7 - 2 * j]}, v{dstp[6 - 2 * j]}")
            e(f"v_cvt_pk_bf16_f32 v{224 + j}, v{dstp[7 - 2 * j] + 1}, v{dstp[6 - 2 * j] + 1}")
        e(f"""
        v_lshlrev_b32 v9, 13, v5
        v_lshl_add_u32 v9, v6, 4, v9
        s_lshl_b32 s61, {sG}, 18
        s_lshl_b32 s62, {sW}, 16
        s_add_u32 s61, s61, s62
        s_lshl_b32 s62, {sR}, 7
        s_add_u32 s61, s61, s62
        s_add_u32 s61, s61, {WS_KVT}
        s_add_u32 s62, s61, 4096
        buffer_store_dwordx4 v[220:223], v9, {WS}, s61 offen sc1
        buffer_store_dwordx4 v[224:227], v9, {WS}, s62 offen sc1
        """)
        X = 228
        for c in range(4):
            for h in range(2):
                e(f"v_lshlrev_b32 v{X + 4 * c + 2 * h}, 16, v{QR + 2 * c + h}")
                e(f"v_and_b32 v{X + 4 * c + 2 * h + 1}, 0xffff0000, v{QR + 2 * c + h}")
        for i in range(16):
            e(f"v_accvgpr_write_b32 a{224 + i}, v{X + i}")
        self.stats_partial(X, 210, 212)
        e(f"""
        v_lshlrev_b32 v9, 3, v3
        s_lshl_b32 s61, {sTBX}, 12
        s_lshl_b32 s62, {sCGX}, 9
        s_add_u32 s61, s61, s62
        s_lshl_b32 s62, {sW}, 7
        s_add_u32 s61, s61, s62
        s_add_u32 s61, s61, {WS_ST}
        buffer_store_dwordx2 v[210:211], v9, {WS}, s61 offen sc1
        """)
        for n in range(15, 32):
            tap(n)
        e(f"v_readfirstlane_b32 {sNONCE}, v{EP}")
        e(f"s_and_b32 {sNONCE}, {sNONCE}, 0xfffffff0\ns_add_u32 {sNONCE}, {sNONCE}, {hex(NONCE_STEP)}")
        e("s_waitcnt vmcnt(34)\ns_barrier")
        self.stamp(1)
        e(f"s_add_u32 s63, {sNONCE}, {sXCC}\ns_mov_b32 s65, {WS_FLAG}")
        self.flag_set("s65", "s63", True)
        e(f"""
        v_accvgpr_write_b32 a250, v{DR}
        v_mov_b32 v8, 0
        v_mov_b32 v9, 0
        s_lshr_b32 s61, {sW}, 1
        s_mul_i32 s61, s61, 4608
        s_add_u32 s61, s61, {L_U}
        v_add_u32 v7, s61, v2
        ds_write_b64 v7, v[8:9]
        """)
        e("s_waitcnt vmcnt(0)")
        for n in range(1, 32):
            a = 16 + 4 * n
            for i in range(4):
                hi = a + i + 1 if i < 3 else 144 + n
                e(f"v_alignbyte_b32 v{a + i}, v{hi}, v{a + i}, v12")
        for i in range(4):
            e(f"v_lshl_or_b32 v{16 + i}, v{SP + 2 * i + 1}, 16, v{SP + 2 * i}")

    def conv(self):
        e = self.e
        e(f"s_lshl_b32 s61, {sG}, 7\ns_add_u32 s61, s61, {WS_FLAG}")
        self.poll(32, sNONCE, s0=True)
        self.stamp(2)
        e(f"v_mov_b32 v5, {L_MODE}\nds_read_b32 v6, v5")
        e(f"""
        s_lshr_b32 s61, {sW}, 1
        s_lshl_b32 s62, {sP}, 1
        s_add_u32 s62, s62, s61
        s_lshl_b32 s62, s62, 12
        s_and_b32 s63, {sW}, 1
        s_lshl_b32 s63, s63, 11
        s_add_u32 s62, s62, s63
        s_add_u32 s62, s62, {WS_KVT}
        s_mul_i32 s65, s61, 4608
        s_add_u32 s65, s65, {L_U}
        s_add_u32 s63, s63, s65
        s_add_u32 s63, s63, 512
        s_mov_b32 m0, s63
        s_nop 0
        buffer_load_dwordx4 v1, {WS}, s62 offen sc1 lds
        s_add_u32 s62, s62, 1024
        s_add_u32 m0, s63, 1024
        s_nop 0
        buffer_load_dwordx4 v1, {WS}, s62 offen sc1 lds
        """)
        e(f"""
        v_lshlrev_b32 v9, 3, v3
        s_lshl_b32 s61, {sTBX}, 12
        s_lshl_b32 s62, {sW}, 7
        s_add_u32 s61, s61, s62
        s_add_u32 s61, s61, {WS_ST}
        """)
        for cg in range(8):
            e(f"buffer_load_dwordx2 {vr(240 + 2 * cg, 2)}, v9, {WS}, s61 offen offset:{512 * cg} sc1")
        e(f"s_waitcnt lgkmcnt(0)\nv_readfirstlane_b32 {sMODE}, v6")
        e(f"""
        v_lshlrev_b32 v5, 5, v3
        v_lshrrev_b32 v7, 1, v4
        v_lshlrev_b32 v7, 5, v7
        v_sub_u32 v5, v5, v7
        v_and_b32 v7, 1, v4
        v_lshl_add_u32 v5, v7, 4, v5
        s_and_b32 s62, {sW}, 1
        s_lshl_b32 s62, s62, 8
        s_sub_u32 s62, s65, s62
        s_add_u32 s62, s62, {512 - 192}
        v_add_u32 v5, s62, v5
        """)
        for n in range(7):
            e(f"""
            v_add_u32 v13, {64 * n}, v0
            v_mul_u32_u24 v14, 4682, v13
            v_lshrrev_b32 v14, 16, v14
            v_mul_u32_u24 v15, 14, v14
            v_sub_u32 v13, v13, v15
            v_mul_u32_u24 v14, 3584, v14
            v_lshl_add_u32 v{6 + n}, v13, 4, v14
            """)
        e(f"""
        s_mul_i32 s66, {sW}, {128 * 3584}
        s_mul_i32 s61, {sM}, 224
        s_add_u32 s66, s66, s61
        s_mul_i32 s67, {sW}, 28672
        """)
        e("s_waitcnt vmcnt(8)\ns_barrier")
        ACC = 208

        def bread(cc):
            for d in range(8):
                e(f"ds_read_b128 {vr(144 + 32 * (cc % 2) + 4 * d, 4)}, v5 offset:{512 * d + 192 - 64 * cc}")
        bread(0)
        dma = [(G, n) for G in range(4) for n in range(7)]
        cnt = 0
        for cc in range(4):
            e("s_waitcnt lgkmcnt(0)")
            if cc < 3:
                bread(cc + 1)
            for d in range(8):
                for i in range(8 - d):
                    J = i + d
                    A = vr(16 + 4 * (4 * i + cc), 4)
                    B = vr(144 + 32 * (cc % 2) + 4 * d, 4)
                    C = "0" if (cc == 0 and d == 0) else vr(ACC + 4 * J, 4)
                    pre = None
                    if cnt % 5 == 0 and dma:
                        G, n = dma.pop(0)
                        e(f"s_add_u32 m0, s67, {G * 7168 + n * 1024}")
                        e(f"s_add_u32 s68, s66, {G * 32 * 3584}")
                        pre = f"buffer_load_dwordx4 v{6 + n}, {W1}, s68 offen lds"
                    e(f"v_mfma_f32_16x16x32_bf16 {vr(ACC + 4 * J, 4)}, {A}, {B}, {C}")
                    if pre:
                        e(pre)
                    cnt += 1
        assert not dma
        self.stamp(3)
        e(f"s_lshl_b32 s61, {sW}, 13\ns_add_u32 s61, s61, {L_RED}\nv_add_u32 v5, s61, v1")
        for J in range(8):
            e(f"ds_write_b128 v5, {vr(ACC + 4 * J, 4)} offset:{1024 * J}")
        self.stats_final(240, 14)
        e("v_accvgpr_write_b32 a248, v14\nv_accvgpr_write_b32 a249, v15")
        e("s_waitcnt lgkmcnt(0)\ns_barrier")
        e(f"s_lshl_b32 s61, {sW}, 11\ns_add_u32 s61, s61, {L_RED}\nv_add_u32 v5, s61, v1")
        for jj in range(2):
            for wv in range(4):
                e(f"ds_read_b128 {vr(16 + 16 * jj + 4 * wv, 4)}, v5 offset:{8192 * wv + 1024 * jj}")
        e(f"""
        v_lshrrev_b32 v6, 1, v4
        v_lshl_add_u32 v6, v3, 1, v6
        v_lshlrev_b32 v6, 4, v6
        v_and_b32 v7, 1, v4
        v_xor_b32 v7, 1, v7
        v_lshl_add_u32 v6, v7, 3, v6
        s_lshl_b32 s61, {sW}, 10
        s_add_u32 s61, s61, {L_U + 512}
        v_add_u32 v6, s61, v6
        """)
        for jj in range(2):
            for X in range(2):
                e(f"ds_read_b64 {vr(48 + 4 * jj + 2 * X, 2)}, v6 offset:{4608 * X + 512 * jj}")
        e("v_accvgpr_read_b32 v8, a250")
        e("v_lshlrev_b32 v9, 16, v8\nv_and_b32 v8, 0xffff0000, v8")
        e("s_waitcnt lgkmcnt(0)")
        for jj in range(2):
            b = 16 + 16 * jj
            for X in range(2):
                for h in range(2):
                    e(f"v_pk_add_f32 {vr(b + 8 * X + 2 * h, 2)}, {vr(b + 8 * X + 2 * h, 2)}, {vr(b + 8 * X + 4 + 2 * h, 2)}")
                dreg = "v9" if X == 0 else "v8"
                u = 48 + 4 * jj + 2 * X
                for j in range(4):
                    src = u if j >= 2 else u + 1
                    if j & 1:
                        e(f"v_lshlrev_b32 v10, 16, v{src}")
                    else:
                        e(f"v_and_b32 v10, 0xffff0000, v{src}")
                    e(f"v_fmac_f32 v{b + 8 * X + j}, v10, {dreg}")
            for j in range(4):
                e(f"v_cvt_pk_bf16_f32 v{56 + 4 * jj + j}, v{b + j}, v{b + 8 + j}")
        e(f"""
        v_lshlrev_b32 v5, 6, v3
        v_lshl_add_u32 v5, v4, 4, v5
        s_lshl_b32 s61, {sP}, 13
        s_lshl_b32 s62, {sW}, 11
        s_add_u32 s61, s61, s62
        s_add_u32 s61, s61, {WS_YP}
        buffer_store_dwordx4 v[56:59], v5, {WS}, s61 offen sc1
        buffer_store_dwordx4 v[60:63], v5, {WS}, s61 offen offset:1024 sc1
        s_waitcnt vmcnt(0)
        s_barrier
        """)
        self.stamp(4)
        e(f"s_mov_b32 s65, {WS_FLAG + 32768}")
        self.flag_set("s65", sNONCE, True)

    def window2(self):
        e = self.e
        e(f"""
        s_add_u32 s66, {sW}, 4
        s_min_u32 s66, s66, 6
        s_mul_i32 s61, {sM}, 224
        s_lshl_b32 s62, {sW}, 5
        s_add_u32 s62, s62, s61
        s_lshl_b32 s63, s66, 5
        s_add_u32 s63, s63, s61
        v_lshlrev_b32 v5, 3, v4
        buffer_load_dwordx2 v[16:17], v5, {B1}, s62 offen
        buffer_load_dwordx2 v[18:19], v5, {B1}, s63 offen
        """)
        e(f"""
        v_lshrrev_b32 v6, 3, v0
        v_lshlrev_b32 v6, 10, v6
        v_and_b32 v7, 7, v0
        v_lshl_add_u32 v6, v7, 4, v6
        s_mul_i32 s67, {sW}, {448 * 1024}
        s_lshl_b32 s61, {sCGX}, 7
        s_add_u32 s67, s67, s61
        """)
        for kk in range(14):
            P, u = kk // 7, kk % 7
            for qd in range(4):
                if u < 3:
                    f = 224 * P + 32 * u + 8 * qd
                elif u == 3:
                    f = 224 * P + 96 + 8 * qd if qd < 2 else 224 * P + 112 + 96 + 8 * (qd - 2)
                else:
                    f = 224 * P + 112 + 32 * (u - 4) + 8 * qd
                e(f"s_add_u32 s68, s67, {f * 1024}")
                e(f"buffer_load_dwordx4 {ar(16 * kk + 4 * qd, 4)}, v6, {W2}, s68 offen")
        e(f"""
        v_lshrrev_b32 v7, 2, v3
        v_lshl_add_u32 v7, v4, 2, v7
        v_mul_u32_u24 v7, 224, v7
        v_and_b32 v8, 3, v3
        v_lshl_add_u32 v7, v8, 3, v7
        s_lshl_b32 s61, {sW}, 5
        s_lshl_b32 s62, s66, 5
        v_add_u32 v8, s62, v7
        v_add_u32 v7, s61, v7
        v_add_u32 v9, 57344, v7
        v_add_u32 v10, 57344, v8
        v_mov_b32 v20, 0x3f803f80
        v_mov_b32 v21, 0x3f803f80
        v_mov_b32 v22, 0x3f803f80
        v_mov_b32 v23, 0x3f803f80
        """)
        for half in range(2):
            for kq in range(2):
                for ks in range(4):
                    k = 4 * kq + ks
                    for t in range(2):
                        base = (7, 8)[t] if half == 0 else (9, 10)[t]
                        d = 32 + 8 * ks + 4 * t
                        e(f"ds_read_b64_tr_b16 {vr(d, 2)}, v{base} offset:{k * 7168}")
                        e(f"ds_read_b64_tr_b16 {vr(d + 2, 2)}, v{base} offset:{k * 7168 + 3584}")
                    if ks == 1:
                        e("s_waitcnt lgkmcnt(4)")
                e("s_waitcnt lgkmcnt(0)")
                for ks in range(4):
                    for t in range(2):
                        d = 32 + 8 * ks + 4 * t
                        first = half == 0 and kq == 0 and ks == 0
                        C = "0" if first else vr(24 + 4 * t, 4)
                        e(f"v_mfma_f32_16x16x32_bf16 {vr(24 + 4 * t, 4)}, {vr(d, 4)}, v[20:23], {C}")
        e("s_waitcnt vmcnt(56)")
        for t in range(2):
            s = 16 + 2 * t
            d = 64 + 4 * t
            e(f"v_lshlrev_b32 v{d}, 16, v{s}\nv_and_b32 v{d + 1}, 0xffff0000, v{s}")
            e(f"v_lshlrev_b32 v{d + 2}, 16, v{s + 1}\nv_and_b32 v{d + 3}, 0xffff0000, v{s + 1}")
            for j in range(4):
                e(f"v_mul_f32 v{d + j}, {hex(LOG2E)}, v{d + j}")
        e(f"""
        v_lshlrev_b32 v5, 4, v4
        s_lshl_b32 s61, s2, 10
        s_add_u32 s61, s61, {WS_TAB}
        s_lshl_b32 s62, {sW}, 6
        s_add_u32 s62, s62, s61
        s_lshl_b32 s63, s66, 6
        s_add_u32 s63, s63, s61
        buffer_store_dwordx4 v[24:27], v5, {WS}, s62 offen
        buffer_store_dwordx4 v[28:31], v5, {WS}, s63 offen
        buffer_store_dwordx4 v[64:67], v5, {WS}, s62 offen offset:512
        buffer_store_dwordx4 v[68:71], v5, {WS}, s63 offen offset:512
        """)
        e(f"s_lshl_b32 s61, {sCGX}, 7\ns_add_u32 s61, s61, {WS_FLAG + 32768}")
        self.poll(32, sNONCE)
        self.stamp(5)
        e(f"""
        v_lshlrev_b32 v5, 14, v4
        v_lshl_add_u32 v5, v3, 2, v5
        s_lshl_b32 s61, {sCGX}, 18
        s_lshl_b32 s62, {sTBX}, 8
        s_add_u32 s61, s61, s62
        s_lshl_b32 s62, {sW}, 6
        s_add_u32 s61, s61, s62
        s_add_u32 s61, s61, {WS_YP}
        """)
        for c in range(4):
            for h in range(2):
                e(f"s_add_u32 s62, s61, {c * 65536 + h * 8192}")
                e(f"buffer_load_dword a{240 + 2 * c + h}, v5, {WS}, s62 offen sc1")
        e("s_waitcnt vmcnt(0)")

    def round_body(self):
        e = self.e
        e.label("L_round")
        X = 16
        for i in range(16):
            e(f"v_accvgpr_read_b32 v{X + i}, a{224 + i}")
        for i in range(8):
            e(f"v_accvgpr_read_b32 v{48 + i}, a{240 + i}")
        e("v_accvgpr_read_b32 v8, a248\nv_accvgpr_read_b32 v9, a249")
        for c in range(4):
            for h in range(2):
                y = 48 + 2 * c + h
                x = X + 4 * c + 2 * h
                e(f"v_lshlrev_b32 v56, 16, v{y}\nv_and_b32 v57, 0xffff0000, v{y}")
                e(f"v_pk_fma_f32 v[58:59], {vr(x, 2)}, v[8:9], v[8:9] op_sel:[0,0,1] op_sel_hi:[1,0,1]")
                e(f"v_pk_fma_f32 {vr(x, 2)}, v[58:59], v[56:57], {vr(x, 2)}")
        for i in range(16):
            e(f"v_accvgpr_write_b32 a{224 + i}, v{X + i}")
        for s in range(2):
            for q in range(4):
                x = X + 8 * s + 2 * q
                e(f"v_cvt_pk_bf16_f32 v{40 + 4 * s + q}, v{x}, v{x + 1}")
        self.stats_partial(X, 60, 62)
        e(f"""
        s_lshl_b32 s61, {sTEAM}, 3
        s_lshl_b32 s62, {sTH}, 2
        s_add_u32 s61, s61, s62
        s_add_u32 s61, s61, {sW}
        s_lshl_b32 s61, s61, 14
        s_lshl_b32 s62, {sCGX}, 11
        s_add_u32 s61, s61, s62
        s_lshl_b32 s62, {sRND}, 21
        s_add_u32 s61, s61, s62
        s_add_u32 s61, s61, {WS_XF}
        v_lshlrev_b32 v9, 3, v3
        s_lshl_b32 s62, {sTBX}, 12
        s_lshl_b32 s63, {sCGX}, 9
        s_add_u32 s62, s62, s63
        s_lshl_b32 s63, {sW}, 7
        s_add_u32 s62, s62, s63
        s_lshl_b32 s63, {sRND}, 18
        s_add_u32 s62, s62, s63
        s_add_u32 s62, s62, {WS_ST + 131072}
        """)
        self.dual([f"buffer_store_dwordx4 v[40:43], v1, {WS}, s61 offen",
                   f"buffer_store_dwordx4 v[44:47], v1, {WS}, s61 offen offset:1024",
                   f"buffer_store_dwordx2 v[60:61], v9, {WS}, s62 offen"])
        e("s_waitcnt vmcnt(0)\ns_barrier")
        e(f"s_mul_i32 s65, {sRND}, {3 * 32768}\ns_add_u32 s65, s65, {WS_FLAG + 2 * 32768}")
        self.flag_set("s65", sNONCE, False)
        if self.stop_here("x1"):
            return True
        e(f"""
        s_lshr_b32 s69, {sR}, 4
        s_lshl_b32 s69, s69, 14
        s_lshl_b32 s61, {sG}, 7
        s_add_u32 s69, s69, s61
        s_add_u32 s61, s69, s65
        """)
        self.poll(16, sNONCE)
        if self.prof:
            L = e.newlabel("L_st")
            e(f"s_cmp_eq_u32 {sRND}, 0\ns_cbranch_scc0 {L}")
            self.stamp(6)
            e.label(L)
        L = e.newlabel("L_noep")
        e(f"s_or_b32 s61, s2, {sRND}\ns_or_b32 s61, s61, {sW}\ns_cmp_eq_u32 s61, 0\ns_cbranch_scc0 {L}")
        e(f"v_mov_b32 v5, {sNONCE}\ns_mov_b64 exec, 1\nbuffer_store_dword v5, off, {WS}, 0 sc1\ns_mov_b64 exec, -1")
        e.label(L)
        self.gemm1()
        if self.stop_here("act"):
            return True
        self.gemm2()
        return False

    def gemm1(self):
        e = self.e
        e(f"""
        v_lshlrev_b32 v9, 3, v3
        s_lshl_b32 s61, {sTEAM}, 1
        s_lshr_b32 s62, {sW}, 1
        s_add_u32 s61, s61, s62
        s_lshl_b32 s61, s61, 12
        s_and_b32 s62, {sW}, 1
        s_lshl_b32 s62, s62, 8
        s_add_u32 s61, s61, s62
        s_lshl_b32 s62, {sRND}, 18
        s_add_u32 s61, s61, s62
        s_add_u32 s61, s61, {WS_ST + 131072}
        s_add_u32 s62, s61, 128
        """)
        for ee in range(2):
            for cg in range(8):
                e(f"buffer_load_dwordx2 {vr(144 + 16 * ee + 2 * cg, 2)}, v9, {WS}, s{61 + ee} offen offset:{512 * cg} sc1")
        e(f"""
        s_lshl_b32 s61, {sTEAM}, 3
        s_lshl_b32 s62, {sW}, 1
        s_add_u32 s61, s61, s62
        s_lshl_b32 s61, s61, 14
        s_lshl_b32 s62, {sRND}, 21
        s_add_u32 s61, s61, s62
        s_add_u32 s66, s61, {WS_XF}
        s_add_u32 s67, s66, 16384
        """)
        for ks in range(16):
            if ks and ks % 4 == 0:
                e("s_add_u32 s66, s66, 4096\ns_add_u32 s67, s67, 4096")
            for ee in range(2):
                e(f"buffer_load_dwordx4 {vr(16 + 64 * ee + 4 * ks, 4)}, v1, {WS}, s{66 + ee} offen offset:{1024 * (ks % 4)} sc1")
        e("""
        v_lshrrev_b32 v6, 2, v3
        v_lshl_add_u32 v6, v4, 2, v6
        v_mul_u32_u24 v6, 224, v6
        v_and_b32 v7, 3, v3
        v_lshl_add_u32 v6, v7, 3, v6
        v_add_u32 v7, 57344, v6
        """)
        e("s_waitcnt vmcnt(32)")
        self.stats_final(144, 8, LOG2E)
        self.stats_final(160, 10, LOG2E)
        e(f"v_mov_b32 v12, {hex(LN2)}\nv_mov_b32 v13, {hex(LN2)}")
        e(f"s_mov_b32 s76, 2.0\ns_mov_b32 s77, 2.0\ns_mov_b32 s78, {hex(M2LN2)}\ns_mov_b32 s79, {hex(M2LN2)}")
        AB, ACC = 144, 200

        def aread(ks, m_):
            base = "v6" if ks < 8 else "v7"
            o = (ks % 8) * 7168 + 32 * m_
            d = AB + 28 * (ks % 2) + 4 * m_
            e(f"ds_read_b64_tr_b16 {vr(d, 2)}, {base} offset:{o}")
            e(f"ds_read_b64_tr_b16 {vr(d + 2, 2)}, {base} offset:{o + 3584}")
        for m_ in range(7):
            aread(0, m_)
        extra = 0
        for ks in range(16):
            e(f"s_waitcnt vmcnt({2 * (15 - ks) + extra})")
            for m_ in range(7):
                if ks < 15:
                    e("s_waitcnt lgkmcnt(12)")
                else:
                    e(f"s_waitcnt lgkmcnt({2 * (6 - m_)})")
                A = vr(AB + 28 * (ks % 2) + 4 * m_, 4)
                for ee in range(2):
                    acc = vr(ACC + 8 * m_ + 4 * ee, 4)
                    C = "0" if ks == 0 else acc
                    e(f"v_mfma_f32_16x16x32_bf16 {acc}, {A}, {vr(16 + 64 * ee + 4 * ks, 4)}, {C}")
                if ks < 15:
                    aread(ks + 1, m_)
            if ks == 7:
                e(f"v_lshlrev_b32 v5, 4, v4\ns_lshl_b32 s61, s2, 10\ns_add_u32 s61, s61, {WS_TAB}")
                for m_ in range(7):
                    e(f"buffer_load_dwordx4 {vr(16 + 4 * m_, 4)}, v5, {WS}, s61 offen offset:{64 * m_} sc1")
                    e(f"buffer_load_dwordx4 {vr(80 + 4 * m_, 4)}, v5, {WS}, s61 offen offset:{512 + 64 * m_} sc1")
                extra = 14
        if self.prof:
            L = e.newlabel("L_st")
            e(f"s_cmp_eq_u32 {sRND}, 0\ns_cbranch_scc0 {L}")
            self.stamp(7)
            e.label(L)
        e(f"""
        s_lshl_b32 s61, {sTEAM}, 3
        s_lshl_b32 s62, {sW}, 1
        s_add_u32 s61, s61, s62
        s_lshl_b32 s61, s61, 4
        s_add_u32 s61, s61, {sM}
        s_mul_i32 s61, s61, 3584
        s_mul_i32 s62, {sRND}, {ACT_ROUND}
        s_add_u32 s61, s61, s62
        s_add_u32 s66, s61, {WS_ACT}
        s_add_u32 s67, s66, {16 * 3584}
        s_waitcnt vmcnt(0)
        """)
        for m_ in range(7):
            cs, bl = 16 + 4 * m_, 80 + 4 * m_
            units = [(ee, h) for ee in range(2) for h in range(2)]
            T = {u: 112 + 6 * i for i, u in enumerate(units)}
            for (ee, h) in units:
                t = T[(ee, h)]
                st = vr(8 + 2 * ee, 2)
                e(f"v_pk_fma_f32 {vr(t, 2)}, {vr(cs + 2 * h, 2)}, {st}, {vr(bl + 2 * h, 2)} op_sel:[0,1,0] op_sel_hi:[1,1,1]")
            for (ee, h) in units:
                t = T[(ee, h)]
                st = vr(8 + 2 * ee, 2)
                acc = vr(ACC + 8 * m_ + 4 * ee + 2 * h, 2)
                e(f"v_pk_fma_f32 {vr(t, 2)}, {acc}, {st}, {vr(t, 2)} op_sel:[0,0,0] op_sel_hi:[1,0,1]")
            for u in units:
                t = T[u]
                e(f"v_exp_f32 v{t + 2}, v{t}\nv_exp_f32 v{t + 3}, v{t + 1}")
            for u in units:
                t = T[u]
                e(f"v_pk_add_f32 {vr(t + 4, 2)}, {vr(t + 2, 2)}, s[76:77]")
            for u in units:
                t = T[u]
                e(f"v_pk_fma_f32 {vr(t + 2, 2)}, {vr(t + 2, 2)}, {vr(t + 4, 2)}, s[76:77]")
            for u in units:
                t = T[u]
                e(f"v_rcp_f32 v{t + 2}, v{t + 2}\nv_rcp_f32 v{t + 3}, v{t + 3}")
            for u in units:
                t = T[u]
                e(f"v_pk_fma_f32 {vr(t + 2, 2)}, {vr(t + 2, 2)}, s[78:79], v[12:13]")
            for u in units:
                t = T[u]
                e(f"v_pk_mul_f32 {vr(t, 2)}, {vr(t, 2)}, {vr(t + 2, 2)}")
            for (ee, h) in units:
                t = T[(ee, h)]
                d = 44 + 16 * ee + 2 * m_ + h
                e(f"v_cvt_pk_bf16_f32 v{d}, v{t}, v{t + 1}")
            if m_ % 2 == 1:
                u = m_ // 2
                self.dual([f"buffer_store_dwordx4 {vr(44 + 16 * ee + 4 * u, 4)}, v1, {WS}, s{66 + ee} offen offset:{1024 * u}"
                           for ee in range(2)])
            if m_ == 6:
                self.dual([f"buffer_store_dwordx2 {vr(44 + 16 * ee + 12, 2)}, v2, {WS}, s{66 + ee} offen offset:3072"
                           for ee in range(2)])
        e("s_waitcnt vmcnt(0)\ns_barrier")
        e(f"s_mul_i32 s65, {sRND}, {3 * 32768}\ns_add_u32 s65, s65, {WS_FLAG + 3 * 32768}")
        self.flag_set("s65", sNONCE, False)
        if self.prof:
            L = e.newlabel("L_st")
            e(f"s_cmp_eq_u32 {sRND}, 0\ns_cbranch_scc0 {L}")
            self.stamp(8)
            e.label(L)
        L = e.newlabel("L_notr")
        e(f"s_cmp_eq_u32 {sRND}, 0\ns_cbranch_scc0 {L}")
        e(f"""
        s_mul_i32 s61, {sW}, 12288
        s_add_u32 s61, s61, {L_S}
        v_and_b32 v5, 7, v0
        v_lshlrev_b32 v6, 1, v4
        v_xor_b32 v5, v5, v6
        v_lshlrev_b32 v5, 4, v5
        v_lshrrev_b32 v6, 3, v0
        v_lshl_add_u32 v5, v6, 7, v5
        v_add_u32 v5, s61, v5
        v_lshrrev_b32 v6, 2, v3
        v_lshl_add_u32 v7, v4, 2, v6
        v_lshlrev_b32 v7, 7, v7
        v_lshrrev_b32 v6, 1, v6
        v_lshl_add_u32 v6, v4, 1, v6
        v_and_b32 v6, 3, v6
        v_and_b32 v14, 3, v3
        v_lshrrev_b32 v15, 1, v14
        v_lshl_add_u32 v7, v15, 4, v7
        v_and_b32 v14, 1, v14
        v_lshl_add_u32 v7, v14, 3, v7
        v_add_u32 v7, s61, v7
        """)
        for c in range(4):
            e(f"v_xor_b32 v14, {c}, v6\nv_lshl_add_u32 v{16 + c}, v14, 5, v7")
        for k0 in range(0, 14, 3):
            ks_ = list(range(k0, min(k0 + 3, 14)))
            for sl, kk in enumerate(ks_):
                for qd in range(4):
                    e(f"ds_write_b128 v5, {ar(16 * kk + 4 * qd, 4)} offset:{sl * 4096 + qd * 1024}")
            e("s_waitcnt lgkmcnt(0)")
            for sl, kk in enumerate(ks_):
                for c in range(4):
                    for hh in range(2):
                        e(f"ds_read_b64_tr_b16 {ar(16 * kk + 4 * c + 2 * hh, 2)}, v{16 + c} offset:{sl * 4096 + hh * 2048}")
                e("s_waitcnt lgkmcnt(6)")
            e("s_waitcnt lgkmcnt(0)")
        e.label(L)

    def gemm2(self):
        e = self.e
        e("s_add_u32 s61, s69, s65")
        self.poll(16, sNONCE)
        if self.prof:
            L = e.newlabel("L_st")
            e(f"s_cmp_eq_u32 {sRND}, 0\ns_cbranch_scc0 {L}")
            self.stamp(9)
            e.label(L)
        e(f"""
        s_lshl_b32 s61, {sTEAM}, 3
        s_lshl_b32 s62, {sTH}, 2
        s_add_u32 s61, s61, s62
        s_lshl_b32 s61, s61, 4
        s_lshl_b32 s62, {sW}, 2
        s_add_u32 s61, s61, s62
        s_mul_i32 s61, s61, 3584
        s_mul_i32 s62, {sRND}, {ACT_ROUND}
        s_add_u32 s61, s61, s62
        s_add_u32 s61, s61, {WS_ACT}
        """)
        for n in range(4):
            e(f"s_add_u32 s62, {sW}, {n}\ns_and_b32 s62, s62, 3\ns_mul_i32 s62, s62, {16 * 3584}\ns_add_u32 s{70 + n}, s61, s62")
        for i in range(4):
            e(f"v_add_u32 v{208 + i}, {3584 * i}, v1\nv_add_u32 v{212 + i}, {3584 * i}, v2")
        RB, ACC = 16, 144
        issued = []

        def bload(kk):
            P, u = kk // 7, kk % 7
            for n in range(4):
                d = RB + 16 * (kk % 8) + 4 * n
                if u < 3:
                    e(f"buffer_load_dwordx4 {vr(d, 4)}, v{208 + 2 * P}, {WS}, s{70 + n} offen offset:{1024 * u} sc1")
                    issued.append(kk)
                elif u == 3:
                    e(f"buffer_load_dwordx2 {vr(d, 2)}, v{212 + 2 * P}, {WS}, s{70 + n} offen offset:3072 sc1")
                    e(f"buffer_load_dwordx2 {vr(d + 2, 2)}, v{213 + 2 * P}, {WS}, s{70 + n} offen offset:3072 sc1")
                    issued.extend([kk, kk])
                else:
                    e(f"buffer_load_dwordx4 {vr(d, 4)}, v{209 + 2 * P}, {WS}, s{70 + n} offen offset:{1024 * (u - 4)} sc1")
                    issued.append(kk)
        for kk in range(8):
            bload(kk)
        for kk in range(14):
            younger = sum(1 for x in issued if x > kk)
            e(f"s_waitcnt vmcnt({younger})")
            for n in range(4):
                for c in range(4):
                    acc = vr(ACC + 16 * n + 4 * c, 4)
                    C = "0" if kk == 0 else acc
                    e(f"v_mfma_f32_16x16x32_bf16 {acc}, {ar(16 * kk + 4 * c, 4)}, {vr(RB + 16 * (kk % 8) + 4 * n, 4)}, {C}")
            if kk + 8 < 14:
                bload(kk + 8)
        if self.prof:
            L = e.newlabel("L_st")
            e(f"s_cmp_eq_u32 {sRND}, 0\ns_cbranch_scc0 {L}")
            self.stamp(10)
            e.label(L)
        for n in range(1, 4):
            e(f"s_add_u32 s61, {sW}, {n}\ns_and_b32 s61, s61, 3\ns_mul_i32 s61, s61, 12288")
            e(f"s_add_u32 s61, s61, {L_S + (n - 1) * 4096}\nv_add_u32 v{4 + n}, s61, v1")
        for n in range(1, 4):
            for c in range(4):
                e(f"ds_write_b128 v{4 + n}, {vr(ACC + 16 * n + 4 * c, 4)} offset:{1024 * c}")
        e(f"s_mul_i32 s61, {sW}, 12288\ns_add_u32 s61, s61, {L_S}\nv_add_u32 v8, s61, v1")
        X = 64
        for i in range(16):
            e(f"v_accvgpr_read_b32 v{X + i}, a{224 + i}")
        for i in range(0, 16, 2):
            e(f"v_pk_add_f32 {vr(X + i, 2)}, {vr(X + i, 2)}, {vr(ACC + i, 2)}")
        e("s_waitcnt lgkmcnt(0)\ns_barrier")
        for sl in range(3):
            for c in range(4):
                e(f"ds_read_b128 {vr(16 + 16 * sl + 4 * c, 4)}, v8 offset:{4096 * sl + 1024 * c}")
        for sl in range(3):
            e(f"s_waitcnt lgkmcnt({4 * (2 - sl)})")
            for i in range(0, 16, 2):
                e(f"v_pk_add_f32 {vr(X + i, 2)}, {vr(X + i, 2)}, {vr(16 + 16 * sl + i, 2)}")
        Lout = e.newlabel("L_out")
        e(f"s_cmp_eq_u32 {sRND}, 1\ns_cbranch_scc1 {Lout}")
        for i in range(16):
            e(f"v_accvgpr_write_b32 a{224 + i}, v{X + i}")
        self.stats_partial(X, 60, 62)
        e(f"""
        v_lshlrev_b32 v9, 3, v3
        s_lshl_b32 s62, {sTBX}, 12
        s_lshl_b32 s63, {sW}, 7
        s_add_u32 s62, s62, s63
        s_add_u32 s66, s62, {WS_ST + 2 * 131072}
        s_lshl_b32 s63, {sCGX}, 9
        s_add_u32 s62, s66, s63
        """)
        self.dual([f"buffer_store_dwordx2 v[60:61], v9, {WS}, s62 offen"])
        e("s_waitcnt vmcnt(0)\ns_barrier")
        e(f"s_mov_b32 s65, {WS_FLAG + 4 * 32768}")
        self.flag_set("s65", sNONCE, False)
        e(f"""
        s_lshr_b32 s61, {sR}, 3
        s_lshl_b32 s61, s61, 13
        s_lshl_b32 s62, {sG}, 7
        s_add_u32 s61, s61, s62
        s_add_u32 s61, s61, s65
        """)
        self.poll(8, sNONCE)
        self.stamp(11)
        for cg in range(8):
            e(f"buffer_load_dwordx2 {vr(16 + 2 * cg, 2)}, v9, {WS}, s66 offen offset:{512 * cg} sc1")
        e("s_waitcnt vmcnt(0)")
        self.stats_final(16, 14)
        e("v_accvgpr_write_b32 a248, v14\nv_accvgpr_write_b32 a249, v15")
        e(f"s_mov_b32 {sRND}, 1\ns_nop 1\ns_branch L_round")
        e.label(Lout)
        for c in range(4):
            e(f"v_cvt_pk_bf16_f32 v{16 + 2 * c}, v{X + 4 * c}, v{X + 4 * c + 1}")
            e(f"v_cvt_pk_bf16_f32 v{17 + 2 * c}, v{X + 4 * c + 2}, v{X + 4 * c + 3}")
        e(f"""
        v_lshlrev_b32 v10, 10, v3
        v_lshl_add_u32 v10, v4, 3, v10
        s_lshl_b32 s61, {sTBX}, 16
        s_lshl_b32 s62, {sW}, 14
        s_add_u32 s61, s61, s62
        s_lshl_b32 s62, {sCGX}, 7
        s_add_u32 s61, s61, s62
        """)
        for c in range(4):
            e(f"buffer_store_dwordx2 {vr(16 + 2 * c, 2)}, v10, {OUT}, s61 offen offset:{32 * c}")

    def build(self):
        e = self.e
        self.prologue()
        self.p0()
        done = self.stop_here("p0")
        if not done:
            self.conv()
            done = self.stop_here("conv")
        if not done:
            self.window2()
            done = self.round_body()
        e.label("L_fin")
        if self.prof:
            e("s_waitcnt vmcnt(0)")
            self.stamp(12)
            L = e.newlabel("L_np")
            e(f"s_cmp_eq_u32 {sW}, 0\ns_cbranch_scc0 {L}")
            e(f"s_lshl_b32 s61, s2, 6\ns_add_u32 s61, s61, {WS_PROF}\ns_mov_b64 exec, 1")
            for i in range(13):
                e(f"v_mov_b32 v5, s{80 + i}\nbuffer_store_dword v5, off, {WS}, s61 offset:{4 * i}")
            e("s_mov_b64 exec, -1")
            e.label(L)
        e.label("L_end")
        e("s_endpgm")
        body = e.finish()
        hdr = open(REF).read().split("; Override launch")[0]
        return f"""{hdr}; Override launch geometry (harness parses the next line).
; @launch grid=(256,1,1) block=(256,1,1) lds={LDS_BYTES}
.amdgcn_target "amdgcn-amd-amdhsa--gfx950"
.text
.globl {KNAME}
.p2align 8
.type {KNAME},@function
{KNAME}:
{body}
.section .rodata,"a"
.p2align 6
.amdhsa_kernel {KNAME}
  .amdhsa_next_free_vgpr 512
  .amdhsa_next_free_sgpr 102
  .amdhsa_accum_offset 256
  .amdhsa_group_segment_fixed_size 0
  .amdhsa_kernarg_size 104
  .amdhsa_user_sgpr_count 2
  .amdhsa_user_sgpr_kernarg_segment_ptr 1
  .amdhsa_system_sgpr_workgroup_id_x 1
.end_amdhsa_kernel
"""


if __name__ == "__main__":
    import argparse
    ap = argparse.ArgumentParser()
    ap.add_argument("-o", default="interleave_layers__ssm_conv_h3__dense_activation_mish__prompt.s")
    ap.add_argument("--prof", action="store_true")
    ap.add_argument("--stop", default=None)
    a = ap.parse_args()
    g = Gen(prof=a.prof, stop=a.stop)
    txt = g.build()
    open(a.o, "w").write(txt)
    print("lines", txt.count("\n"), "bytes", len(txt), "nops", g.e.nops)
```

```python
import sys
from emit import Emit

KNAME = "interleave_layers__ssm_conv_h3__dense_activation_mish__prompt_kernel"
REF = "interleave_layers__ssm_conv_h3__dense_activation_mish__prompt.s.ref"

WS_FLAG = 0x1000
WS_PROF = 0x1700000
WS_KVT = 0x40000
WS_YP = 0x240000
WS_ST = 0x440000
WS_TAB = 0x4C0000
WS_XF = 0x500000
WS_ACT = 0x900000
WS_END = 0x1710000
ACT_ROUND = 0x700000
L_S = 114688
L_U = L_S
L_RED = L_S + 9216
L_MODE = L_S + 41984
LDS_BYTES = 163840
NONCE_STEP = 0x9E3779B0
LOG2E = 0x3FB8AA3B
LN2 = 0x3F317218
M2LN2 = 0xBFB17218
SPIN = 30000

WS, Q, K, V, SK, W1, W2, OUT, SH, DD, B1 = ("s[8:11]", "s[12:15]", "s[16:19]", "s[20:23]", "s[24:27]", "s[28:31]",
                                            "s[32:35]", "s[36:39]", "s[40:43]", "s[44:47]", "s[48:51]")
sW, sG, sR, sNONCE, sMODE = "s3", "s4", "s5", "s6", "s7"
sXCC, sTEAM, sM, sTBX, sCGX, sRND, sLIM, sTH = "s52", "s53", "s54", "s55", "s56", "s57", "s58", "s59"
sP = "s64"


def vr(a, n):
    return f"v[{a}:{a + n - 1}]" if n > 1 else f"v{a}"


def ar(a, n):
    return f"a[{a}:{a + n - 1}]" if n > 1 else f"a{a}"


class Gen:
    def __init__(self, opts=(), prof=None, stop=None, prnd=0, clk="s_memrealtime"):
        self.e = Emit()
        self.prof = prof
        self.stop = stop
        self.stamps = []
        self.opts = set(opts)
        self.ldsc = '' if 'plainld' in self.opts else ' sc1'
        self.xr = 31 if 'reuse' in self.opts else 21
        self.actr = 0 if 'reuse' in self.opts else ACT_ROUND
        self.prnd = prnd
        self.clk = clk

    def stamp(self, name, rnd=None):
        prof_set = self.prof
        if not prof_set or (prof_set != "all" and name not in prof_set):
            return
        e = self.e
        i = len(self.stamps)
        assert i < 20
        self.stamps.append(name)
        L = None
        if rnd is not None:
            L = e.newlabel("L_st")
            e(f"s_cmp_eq_u32 {sRND}, {rnd}\ns_cbranch_scc0 {L}")
        e(f"{self.clk} s[100:101]\ns_waitcnt lgkmcnt(0)\ns_mov_b32 s{80 + i}, s100")
        if L:
            e.label(L)

    def flag_set(self, phase_off_sreg, val, always_sc1):
        e = self.e
        L = e.newlabel("L_nf")
        e(f"s_cmp_eq_u32 {sW}, 0\ns_cbranch_scc0 {L}")
        e(f"s_lshl_b32 s60, s2, 7\ns_add_u32 s60, s60, {phase_off_sreg}")
        e(f"v_mov_b32 v5, {val}\ns_mov_b64 exec, 1")
        if always_sc1:
            e(f"buffer_store_dword v5, off, {WS}, s60 sc1")
        else:
            self.dual([f"buffer_store_dword v5, off, {WS}, s60"])
        e("s_mov_b64 exec, -1")
        e.label(L)

    def dual(self, stores):
        e = self.e
        Lf, Ld = e.newlabel("L_fast"), e.newlabel("L_done")
        e(f"s_cmp_eq_u32 {sMODE}, 1\ns_cbranch_scc1 {Lf}")
        for s in stores:
            e(s + " sc1")
        e(f"s_branch {Ld}")
        e.label(Lf)
        for s in stores:
            e(s)
        e.label(Ld)

    def poll(self, cnt, expected, s0=False):
        e = self.e
        Ls, Lp, Lo, Lt = e.newlabel("L_skip"), e.newlabel("L_poll"), e.newlabel("L_ok"), e.newlabel("L_to")
        e(f"s_cmp_eq_u32 {sW}, 0\ns_cbranch_scc0 {Ls}")
        e(f"v_lshlrev_b32 v5, 10, v0\ns_mov_b32 exec_lo, {hex((1 << cnt) - 1)}\ns_mov_b32 exec_hi, 0\ns_mov_b32 s62, 0")
        e.label(Lp)
        e(f"buffer_load_dword v6, v5, {WS}, s61 offen sc1")
        e(f"s_add_u32 s62, s62, 1\ns_cmp_gt_u32 s62, {sLIM}\ns_cbranch_scc1 {Lt}")
        e("s_waitcnt vmcnt(0)")
        if s0:
            e(f"v_subrev_u32 v7, {expected}, v6\nv_cmp_le_u32 vcc, 16, v7")
        else:
            e(f"v_cmp_ne_u32 vcc, {expected}, v6")
        e(f"s_cmp_eq_u64 vcc, 0\ns_cbranch_scc0 {Lp}\ns_branch {Lo}")
        e.label(Lt)
        e(f"s_mov_b32 {sLIM}, 0\ns_waitcnt vmcnt(0)")
        e.label(Lo)
        if s0:
            e(f"v_subrev_u32 v7, {expected}, v6\nv_cmp_ne_u32 vcc, {sXCC}, v7")
            e(f"s_cmp_eq_u64 vcc, 0\ns_cselect_b32 s62, 1, 0\ns_mov_b64 exec, -1")
            e(f"v_mov_b32 v5, {L_MODE}\nv_mov_b32 v6, s62\nds_write_b32 v5, v6\ns_waitcnt lgkmcnt(0)")
        else:
            e("s_mov_b64 exec, -1")
        e.label(Ls)
        e("s_barrier")

    def xreduce(self, va, vt):
        e = self.e
        for sw in ("v_permlane16_swap_b32", "v_permlane32_swap_b32"):
            e(f"v_mov_b32 v{vt}, v{va}\nv_mov_b32 v{vt + 1}, v{va + 1}")
            e(f"{sw} v{va}, v{vt}\n{sw} v{va + 1}, v{vt + 1}")
            e(f"v_pk_add_f32 {vr(va, 2)}, {vr(va, 2)}, {vr(vt, 2)}")

    def stats_partial(self, vx, vo, vt):
        e = self.e
        e(f"v_pk_add_f32 {vr(vt, 2)}, {vr(vx, 2)}, {vr(vx + 2, 2)}")
        e(f"v_pk_mul_f32 {vr(vt + 2, 2)}, {vr(vx, 2)}, {vr(vx, 2)}")
        e(f"v_pk_fma_f32 {vr(vt + 2, 2)}, {vr(vx + 2, 2)}, {vr(vx + 2, 2)}, {vr(vt + 2, 2)}")
        for i in range(4, 16, 2):
            e(f"v_pk_add_f32 {vr(vt, 2)}, {vr(vt, 2)}, {vr(vx + i, 2)}")
            e(f"v_pk_fma_f32 {vr(vt + 2, 2)}, {vr(vx + i, 2)}, {vr(vx + i, 2)}, {vr(vt + 2, 2)}")
        e(f"v_add_f32 v{vo}, v{vt}, v{vt + 1}\nv_add_f32 v{vo + 1}, v{vt + 2}, v{vt + 3}")
        self.xreduce(vo, vt)

    def stats_final(self, vp, vo, scale=None):
        e = self.e
        for i in range(4):
            e(f"v_pk_add_f32 {vr(vp + 4 * i, 2)}, {vr(vp + 4 * i, 2)}, {vr(vp + 4 * i + 2, 2)}")
        e(f"v_pk_add_f32 {vr(vp, 2)}, {vr(vp, 2)}, {vr(vp + 4, 2)}")
        e(f"v_pk_add_f32 {vr(vp + 8, 2)}, {vr(vp + 8, 2)}, {vr(vp + 12, 2)}")
        e(f"v_pk_add_f32 {vr(vp, 2)}, {vr(vp, 2)}, {vr(vp + 8, 2)}")
        e(f"v_mul_f32 v{vp}, 0x3b000000, v{vp}\nv_mul_f32 v{vp + 1}, 0x3b000000, v{vp + 1}")
        e(f"v_fma_f32 v{vp + 1}, -v{vp}, v{vp}, v{vp + 1}")
        e(f"v_max_f32 v{vp + 1}, 0, v{vp + 1}\nv_add_f32 v{vp + 1}, 0x3727c5ac, v{vp + 1}")
        e(f"v_rsq_f32 v{vo}, v{vp + 1}")
        if scale is not None:
            e(f"v_mul_f32 v{vo}, {hex(scale)}, v{vo}")
        e(f"v_mul_f32 v{vo + 1}, -v{vp}, v{vo}")

    def stop_here(self, name):
        if self.stop == name:
            self.e("s_waitcnt vmcnt(0) lgkmcnt(0)\ns_branch L_fin")
            return True
        return False

    def prologue(self):
        e = self.e
        e("""
        s_cmp_ge_u32 s2, 256
        s_cbranch_scc1 L_end
        s_load_dwordx16 s[64:79], s[0:1], 0
        s_load_dwordx8 s[80:87], s[0:1], 64
        s_load_dwordx2 s[88:89], s[0:1], 96
        v_lshrrev_b32 v5, 6, v0
        v_and_b32 v0, 63, v0
        v_readfirstlane_b32 s3, v5
        v_lshlrev_b32 v1, 4, v0
        v_lshlrev_b32 v2, 3, v0
        v_and_b32 v3, 15, v0
        v_lshrrev_b32 v4, 4, v0
        s_and_b32 s4, s2, 7
        s_lshr_b32 s5, s2, 3
        s_getreg_b32 s52, hwreg(HW_REG_XCC_ID, 0, 4)
        s_lshr_b32 s60, s5, 4
        s_lshl_b32 s53, s4, 1
        s_add_u32 s53, s53, s60
        s_and_b32 s54, s5, 15
        s_lshr_b32 s60, s5, 3
        s_lshl_b32 s55, s4, 2
        s_add_u32 s55, s55, s60
        s_and_b32 s56, s5, 7
        s_lshr_b32 s59, s54, 3
        s_mov_b32 s57, 0
        s_mov_b32 s7, 0
        """)
        e(f"s_mov_b32 {sLIM}, {SPIN}")
        e("s_waitcnt lgkmcnt(0)")

        def srd(d, base, n):
            e(f"s_mov_b32 s{d}, s{base}\ns_and_b32 s{d + 1}, s{base + 1}, 0xffff\n"
              f"s_mov_b32 s{d + 2}, {n}\ns_mov_b32 s{d + 3}, 0x00020000")
        srd(8, 88, WS_END)
        srd(16, 66, 2097152)
        srd(20, 68, 2097152)
        srd(40, 70, 4096)
        srd(12, 64, 2097152)
        srd(44, 74, 1024)
        srd(24, 72, 2097152)
        srd(28, 78, 1835008)
        srd(32, 82, 1835008)
        srd(48, 80, 3584)
        srd(36, 84, 2097152)
        e(f"s_lshl_b32 {sP}, {sG}, 5\ns_add_u32 {sP}, {sP}, {sR}")
        self.stamp("start")

    def p0(self):
        e = self.e
        KC, KP, VV, SHR, QR, EP, DR = 176, 184, 188, 196, 200, 208, 209
        e(f"buffer_load_dword v{EP}, off, {WS}, 0 sc1")
        e(f"""
        v_and_b32 v5, 7, v0
        v_lshrrev_b32 v6, 3, v0
        s_lshl_b32 s60, {sR}, 16
        s_lshl_b32 s61, {sG}, 7
        s_add_u32 s60, s60, s61
        s_lshl_b32 s61, {sW}, 5
        s_add_u32 s60, s60, s61
        v_lshlrev_b32 v7, 13, v6
        v_lshl_add_u32 v7, v5, 2, v7
        v_add_u32 v7, s60, v7
        v_subrev_u32 v8, 3072, v7
        s_movk_i32 s60, 4096
        """)
        for i in range(8):
            so = "0" if i < 4 else "s60"
            e(f"buffer_load_dword v{KC + i}, v7, {K}, {so} offen offset:{(i % 4) * 1024}")
        e(f"v_mov_b32 v{KP}, 0\nv_mov_b32 v{KP + 1}, 0\nv_mov_b32 v{KP + 2}, 0")
        e("v_cmpx_le_u32 vcc, 0x2000, v7")
        for i in range(3):
            e(f"buffer_load_dword v{KP + i}, v8, {K}, 0 offen offset:{i * 1024}")
        e("s_mov_b64 exec, -1")
        for i in range(8):
            so = "0" if i < 4 else "s60"
            e(f"buffer_load_dword v{VV + i}, v7, {V}, {so} offen offset:{(i % 4) * 1024}")
        e(f"""
        v_lshlrev_b32 v9, 4, v5
        s_lshl_b32 s61, {sG}, 9
        s_lshl_b32 s62, {sW}, 7
        s_add_u32 s61, s61, s62
        buffer_load_dwordx4 {vr(SHR, 4)}, v9, {SH}, s61 offen
        v_lshlrev_b32 v10, 10, v3
        v_lshl_add_u32 v10, v4, 3, v10
        s_lshl_b32 s61, {sTBX}, 16
        s_lshl_b32 s62, {sW}, 14
        s_add_u32 s61, s61, s62
        s_lshl_b32 s62, {sCGX}, 7
        s_add_u32 s65, s61, s62
        """)
        for c in range(4):
            e(f"buffer_load_dwordx2 {vr(QR + 2 * c, 2)}, v10, {Q}, s65 offen offset:{32 * c}")
        e(f"s_lshl_b32 s61, {sP}, 2\nbuffer_load_dword v{DR}, off, {DD}, s61")
        e(f"""
        v_lshrrev_b32 v11, 1, v4
        v_lshlrev_b32 v11, 4, v11
        v_and_b32 v12, 1, v4
        v_lshlrev_b32 v12, 3, v12
        v_sub_u32 v11, v11, v12
        v_add_u32 v11, v11, v3
        v_subrev_u32 v11, 7, v11
        v_and_b32 v12, 1, v11
        v_lshlrev_b32 v12, 1, v12
        s_lshr_b32 s61, {sW}, 1
        s_lshl_b32 s62, {sP}, 1
        s_add_u32 s61, s61, s62
        s_lshl_b32 s66, s61, 12
        s_and_b32 s67, {sW}, 1
        s_lshl_b32 s62, s67, 8
        s_add_u32 s62, s62, s66
        s_add_u32 s62, s62, 64
        v_and_b32 v13, -2, v11
        v_lshl_add_u32 v13, v13, 1, s62
        s_lshl_b32 s63, s67, 7
        v_add_u32 v15, s63, v11
        v_lshl_add_u32 v14, v15, 1, s66
        """)
        SP = 244
        for j in range(8):
            e(f"v_mov_b32 v{SP + j}, 0")
        for j in range(7, -1, -1):
            e(f"v_add_u32 v240, {2 * j}, v14")
            e(f"v_cmpx_le_i32 vcc, {-j}, v15")
            e(f"buffer_load_ushort v{SP + j}, v240, {SK}, 0 offen")
        e("s_mov_b64 exec, -1")

        def tap(n):
            i, cc = n // 4, n % 4
            off = 512 * i + 64 * cc - 64
            e(f"buffer_load_dwordx4 {vr(16 + 4 * n, 4)}, v13, {SK}, 0 offen offset:{off}")
            e(f"buffer_load_dword v{144 + n}, v13, {SK}, 0 offen offset:{off + 16}")
        for n in range(1, 15):
            tap(n)
        e("s_waitcnt vmcnt(36)")
        for m_ in range(4):
            d = SHR + (m_ >> 1)
            if m_ & 1:
                e(f"v_and_b32 v{210 + 2 * m_}, 0xffff0000, v{d}\nv_and_b32 v{211 + 2 * m_}, 0xffff0000, v{d + 2}")
            else:
                e(f"v_lshlrev_b32 v{210 + 2 * m_}, 16, v{d}\nv_lshlrev_b32 v{211 + 2 * m_}, 16, v{d + 2}")
        for n in range(11):
            src = KP + n if n < 3 else KC + n - 3
            e(f"v_lshlrev_b32 v{218 + 2 * n}, 16, v{src}\nv_and_b32 v{219 + 2 * n}, 0xffff0000, v{src}")
        dstp = [176, 178, 180, 182, 184, 186, 240, 242]
        for i in range(8):
            t = dstp[i]
            e(f"v_pk_mul_f32 {vr(t, 2)}, {vr(218 + 2 * (i + 3), 2)}, {vr(210, 2)}")
            e(f"v_pk_fma_f32 {vr(t, 2)}, {vr(218 + 2 * (i + 2), 2)}, {vr(212, 2)}, {vr(t, 2)}")
            e(f"v_pk_fma_f32 {vr(t, 2)}, {vr(218 + 2 * (i + 1), 2)}, {vr(214, 2)}, {vr(t, 2)}")
            e(f"v_pk_fma_f32 {vr(t, 2)}, {vr(218 + 2 * i, 2)}, {vr(216, 2)}, {vr(t, 2)}")
            e(f"v_lshlrev_b32 v252, 16, v{VV + i}\nv_and_b32 v253, 0xffff0000, v{VV + i}")
            e(f"v_pk_mul_f32 {vr(t, 2)}, {vr(t, 2)}, v[252:253]")
        for j in range(4):
            e(f"v_cvt_pk_bf16_f32 v{220 + j}, v{dstp[7 - 2 * j]}, v{dstp[6 - 2 * j]}")
            e(f"v_cvt_pk_bf16_f32 v{224 + j}, v{dstp[7 - 2 * j] + 1}, v{dstp[6 - 2 * j] + 1}")
        e(f"""
        v_lshlrev_b32 v9, 13, v5
        v_lshl_add_u32 v9, v6, 4, v9
        s_lshl_b32 s61, {sG}, 18
        s_lshl_b32 s62, {sW}, 16
        s_add_u32 s61, s61, s62
        s_lshl_b32 s62, {sR}, 7
        s_add_u32 s61, s61, s62
        s_add_u32 s61, s61, {WS_KVT}
        s_add_u32 s62, s61, 4096
        buffer_store_dwordx4 v[220:223], v9, {WS}, s61 offen sc1
        buffer_store_dwordx4 v[224:227], v9, {WS}, s62 offen sc1
        """)
        X = 228
        for c in range(4):
            for h in range(2):
                e(f"v_lshlrev_b32 v{X + 4 * c + 2 * h}, 16, v{QR + 2 * c + h}")
                e(f"v_and_b32 v{X + 4 * c + 2 * h + 1}, 0xffff0000, v{QR + 2 * c + h}")
        for i in range(16):
            e(f"v_accvgpr_write_b32 a{224 + i}, v{X + i}")
        self.stats_partial(X, 210, 212)
        e(f"""
        v_lshlrev_b32 v9, 3, v3
        s_lshl_b32 s61, {sTBX}, 12
        s_lshl_b32 s62, {sCGX}, 9
        s_add_u32 s61, s61, s62
        s_lshl_b32 s62, {sW}, 7
        s_add_u32 s61, s61, s62
        s_add_u32 s61, s61, {WS_ST}
        buffer_store_dwordx2 v[210:211], v9, {WS}, s61 offen sc1
        """)
        for n in range(15, 32):
            tap(n)
        e(f"v_readfirstlane_b32 {sNONCE}, v{EP}")
        e(f"s_and_b32 {sNONCE}, {sNONCE}, 0xfffffff0\ns_add_u32 {sNONCE}, {sNONCE}, {hex(NONCE_STEP)}")
        e("s_waitcnt vmcnt(34)\ns_barrier")
        self.stamp("p0")
        e(f"s_add_u32 s63, {sNONCE}, {sXCC}\ns_mov_b32 s65, {WS_FLAG}")
        self.flag_set("s65", "s63", True)
        e(f"""
        v_accvgpr_write_b32 a250, v{DR}
        v_mov_b32 v8, 0
        v_mov_b32 v9, 0
        s_lshr_b32 s61, {sW}, 1
        s_mul_i32 s61, s61, 4608
        s_add_u32 s61, s61, {L_U}
        v_add_u32 v7, s61, v2
        ds_write_b64 v7, v[8:9]
        """)
        e("s_waitcnt vmcnt(0)")
        for n in range(1, 32):
            a = 16 + 4 * n
            for i in range(4):
                hi = a + i + 1 if i < 3 else 144 + n
                e(f"v_alignbyte_b32 v{a + i}, v{hi}, v{a + i}, v12")
        for i in range(4):
            e(f"v_lshl_or_b32 v{16 + i}, v{SP + 2 * i + 1}, 16, v{SP + 2 * i}")

    def conv(self):
        e = self.e
        e(f"s_lshl_b32 s61, {sG}, 7\ns_add_u32 s61, s61, {WS_FLAG}")
        self.poll(32, sNONCE, s0=True)
        self.stamp("s0")
        e(f"v_mov_b32 v5, {L_MODE}\nds_read_b32 v6, v5")
        e(f"""
        s_lshr_b32 s61, {sW}, 1
        s_lshl_b32 s62, {sP}, 1
        s_add_u32 s62, s62, s61
        s_lshl_b32 s62, s62, 12
        s_and_b32 s63, {sW}, 1
        s_lshl_b32 s63, s63, 11
        s_add_u32 s62, s62, s63
        s_add_u32 s62, s62, {WS_KVT}
        s_mul_i32 s65, s61, 4608
        s_add_u32 s65, s65, {L_U}
        s_add_u32 s63, s63, s65
        s_add_u32 s63, s63, 512
        s_mov_b32 m0, s63
        s_nop 0
        buffer_load_dwordx4 v1, {WS}, s62 offen sc1 lds
        s_add_u32 s62, s62, 1024
        s_add_u32 m0, s63, 1024
        s_nop 0
        buffer_load_dwordx4 v1, {WS}, s62 offen sc1 lds
        """)
        e(f"""
        v_lshlrev_b32 v9, 3, v3
        s_lshl_b32 s61, {sTBX}, 12
        s_lshl_b32 s62, {sW}, 7
        s_add_u32 s61, s61, s62
        s_add_u32 s61, s61, {WS_ST}
        """)
        for cg in range(8):
            e(f"buffer_load_dwordx2 {vr(240 + 2 * cg, 2)}, v9, {WS}, s61 offen offset:{512 * cg} sc1")
        e(f"s_waitcnt lgkmcnt(0)\nv_readfirstlane_b32 {sMODE}, v6")
        e(f"""
        v_lshlrev_b32 v5, 5, v3
        v_lshrrev_b32 v7, 1, v4
        v_lshlrev_b32 v7, 5, v7
        v_sub_u32 v5, v5, v7
        v_and_b32 v7, 1, v4
        v_lshl_add_u32 v5, v7, 4, v5
        s_and_b32 s62, {sW}, 1
        s_lshl_b32 s62, s62, 8
        s_sub_u32 s62, s65, s62
        s_add_u32 s62, s62, {512 - 192}
        v_add_u32 v5, s62, v5
        """)
        for n in range(7):
            e(f"""
            v_add_u32 v13, {64 * n}, v0
            v_mul_u32_u24 v14, 4682, v13
            v_lshrrev_b32 v14, 16, v14
            v_mul_u32_u24 v15, 14, v14
            v_sub_u32 v13, v13, v15
            v_mul_u32_u24 v14, 3584, v14
            v_lshl_add_u32 v{6 + n}, v13, 4, v14
            """)
        e(f"""
        s_mul_i32 s66, {sW}, {128 * 3584}
        s_mul_i32 s61, {sM}, 224
        s_add_u32 s66, s66, s61
        s_mul_i32 s67, {sW}, 28672
        """)
        e("s_waitcnt vmcnt(8)\ns_barrier")
        ACC = 208

        def bread(cc):
            for d in range(8):
                e(f"ds_read_b128 {vr(144 + 32 * (cc % 2) + 4 * d, 4)}, v5 offset:{512 * d + 192 - 64 * cc}")
        bread(0)
        dma = [(G, n) for G in range(4) for n in range(7)]
        cnt = 0
        for cc in range(4):
            e("s_waitcnt lgkmcnt(0)")
            if cc < 3:
                bread(cc + 1)
            for d in range(8):
                for i in range(8 - d):
                    J = i + d
                    A = vr(16 + 4 * (4 * i + cc), 4)
                    B = vr(144 + 32 * (cc % 2) + 4 * d, 4)
                    C = "0" if (cc == 0 and d == 0) else vr(ACC + 4 * J, 4)
                    pre = None
                    if cnt % 5 == 0 and dma:
                        G, n = dma.pop(0)
                        e(f"s_add_u32 m0, s67, {G * 7168 + n * 1024}")
                        e(f"s_add_u32 s68, s66, {G * 32 * 3584}")
                        pre = f"buffer_load_dwordx4 v{6 + n}, {W1}, s68 offen lds"
                    e(f"v_mfma_f32_16x16x32_bf16 {vr(ACC + 4 * J, 4)}, {A}, {B}, {C}")
                    if pre:
                        e(pre)
                    cnt += 1
        assert not dma
        self.stamp("convm")
        e(f"s_lshl_b32 s61, {sW}, 13\ns_add_u32 s61, s61, {L_RED}\nv_add_u32 v5, s61, v1")
        for J in range(8):
            e(f"ds_write_b128 v5, {vr(ACC + 4 * J, 4)} offset:{1024 * J}")
        self.stats_final(240, 14)
        e("v_accvgpr_write_b32 a248, v14\nv_accvgpr_write_b32 a249, v15")
        e("s_waitcnt lgkmcnt(0)\ns_barrier")
        e(f"s_lshl_b32 s61, {sW}, 11\ns_add_u32 s61, s61, {L_RED}\nv_add_u32 v5, s61, v1")
        for jj in range(2):
            for wv in range(4):
                e(f"ds_read_b128 {vr(16 + 16 * jj + 4 * wv, 4)}, v5 offset:{8192 * wv + 1024 * jj}")
        e(f"""
        v_lshrrev_b32 v6, 1, v4
        v_lshl_add_u32 v6, v3, 1, v6
        v_lshlrev_b32 v6, 4, v6
        v_and_b32 v7, 1, v4
        v_xor_b32 v7, 1, v7
        v_lshl_add_u32 v6, v7, 3, v6
        s_lshl_b32 s61, {sW}, 10
        s_add_u32 s61, s61, {L_U + 512}
        v_add_u32 v6, s61, v6
        """)
        for jj in range(2):
            for X in range(2):
                e(f"ds_read_b64 {vr(48 + 4 * jj + 2 * X, 2)}, v6 offset:{4608 * X + 512 * jj}")
        e("v_accvgpr_read_b32 v8, a250")
        e("v_lshlrev_b32 v9, 16, v8\nv_and_b32 v8, 0xffff0000, v8")
        e("s_waitcnt lgkmcnt(0)")
        for jj in range(2):
            b = 16 + 16 * jj
            for X in range(2):
                for h in range(2):
                    e(f"v_pk_add_f32 {vr(b + 8 * X + 2 * h, 2)}, {vr(b + 8 * X + 2 * h, 2)}, {vr(b + 8 * X + 4 + 2 * h, 2)}")
                dreg = "v9" if X == 0 else "v8"
                u = 48 + 4 * jj + 2 * X
                for j in range(4):
                    src = u if j >= 2 else u + 1
                    if j & 1:
                        e(f"v_lshlrev_b32 v10, 16, v{src}")
                    else:
                        e(f"v_and_b32 v10, 0xffff0000, v{src}")
                    e(f"v_fmac_f32 v{b + 8 * X + j}, v10, {dreg}")
            for j in range(4):
                e(f"v_cvt_pk_bf16_f32 v{56 + 4 * jj + j}, v{b + j}, v{b + 8 + j}")
        e(f"""
        v_lshlrev_b32 v5, 6, v3
        v_lshl_add_u32 v5, v4, 4, v5
        s_lshl_b32 s61, {sP}, 13
        s_lshl_b32 s62, {sW}, 11
        s_add_u32 s61, s61, s62
        s_add_u32 s61, s61, {WS_YP}
        buffer_store_dwordx4 v[56:59], v5, {WS}, s61 offen sc1
        buffer_store_dwordx4 v[60:63], v5, {WS}, s61 offen offset:1024 sc1
        s_waitcnt vmcnt(0)
        s_barrier
        """)
        self.stamp("yst")
        e(f"s_mov_b32 s65, {WS_FLAG + 32768}")
        self.flag_set("s65", sNONCE, True)

    def window2(self):
        e = self.e
        e(f"""
        s_add_u32 s66, {sW}, 4
        s_min_u32 s66, s66, 6
        s_mul_i32 s61, {sM}, 224
        s_lshl_b32 s62, {sW}, 5
        s_add_u32 s62, s62, s61
        s_lshl_b32 s63, s66, 5
        s_add_u32 s63, s63, s61
        v_lshlrev_b32 v5, 3, v4
        buffer_load_dwordx2 v[16:17], v5, {B1}, s62 offen
        buffer_load_dwordx2 v[18:19], v5, {B1}, s63 offen
        """)
        e(f"""
        v_lshrrev_b32 v6, 3, v0
        v_lshlrev_b32 v6, 10, v6
        v_and_b32 v7, 7, v0
        v_lshl_add_u32 v6, v7, 4, v6
        s_mul_i32 s67, {sW}, {448 * 1024}
        s_lshl_b32 s61, {sCGX}, 7
        s_add_u32 s67, s67, s61
        """)
        for kk in range(14):
            P, u = kk // 7, kk % 7
            for qd in range(4):
                if u < 3:
                    f = 224 * P + 32 * u + 8 * qd
                elif u == 3:
                    f = 224 * P + 96 + 8 * qd if qd < 2 else 224 * P + 112 + 96 + 8 * (qd - 2)
                else:
                    f = 224 * P + 112 + 32 * (u - 4) + 8 * qd
                e(f"s_add_u32 s68, s67, {f * 1024}")
                e(f"buffer_load_dwordx4 {ar(16 * kk + 4 * qd, 4)}, v6, {W2}, s68 offen")
        e(f"""
        v_lshrrev_b32 v7, 2, v3
        v_lshl_add_u32 v7, v4, 2, v7
        v_mul_u32_u24 v7, 224, v7
        v_and_b32 v8, 3, v3
        v_lshl_add_u32 v7, v8, 3, v7
        s_lshl_b32 s61, {sW}, 5
        s_lshl_b32 s62, s66, 5
        v_add_u32 v8, s62, v7
        v_add_u32 v7, s61, v7
        v_add_u32 v9, 57344, v7
        v_add_u32 v10, 57344, v8
        v_mov_b32 v20, 0x3f803f80
        v_mov_b32 v21, 0x3f803f80
        v_mov_b32 v22, 0x3f803f80
        v_mov_b32 v23, 0x3f803f80
        """)
        for half in range(2):
            for kq in range(2):
                for ks in range(4):
                    k = 4 * kq + ks
                    for t in range(2):
                        base = (7, 8)[t] if half == 0 else (9, 10)[t]
                        d = 32 + 8 * ks + 4 * t
                        e(f"ds_read_b64_tr_b16 {vr(d, 2)}, v{base} offset:{k * 7168}")
                        e(f"ds_read_b64_tr_b16 {vr(d + 2, 2)}, v{base} offset:{k * 7168 + 3584}")
                    if ks == 1:
                        e("s_waitcnt lgkmcnt(4)")
                e("s_waitcnt lgkmcnt(0)")
                for ks in range(4):
                    for t in range(2):
                        d = 32 + 8 * ks + 4 * t
                        first = half == 0 and kq == 0 and ks == 0
                        C = "0" if first else vr(24 + 4 * t, 4)
                        e(f"v_mfma_f32_16x16x32_bf16 {vr(24 + 4 * t, 4)}, {vr(d, 4)}, v[20:23], {C}")
        e("s_waitcnt vmcnt(56)")
        for t in range(2):
            s = 16 + 2 * t
            d = 64 + 4 * t
            e(f"v_lshlrev_b32 v{d}, 16, v{s}\nv_and_b32 v{d + 1}, 0xffff0000, v{s}")
            e(f"v_lshlrev_b32 v{d + 2}, 16, v{s + 1}\nv_and_b32 v{d + 3}, 0xffff0000, v{s + 1}")
            for j in range(4):
                e(f"v_mul_f32 v{d + j}, {hex(LOG2E)}, v{d + j}")
        e(f"""
        v_lshlrev_b32 v5, 4, v4
        s_lshl_b32 s61, s2, 10
        s_add_u32 s61, s61, {WS_TAB}
        s_lshl_b32 s62, {sW}, 6
        s_add_u32 s62, s62, s61
        s_lshl_b32 s63, s66, 6
        s_add_u32 s63, s63, s61
        buffer_store_dwordx4 v[24:27], v5, {WS}, s62 offen
        buffer_store_dwordx4 v[28:31], v5, {WS}, s63 offen
        buffer_store_dwordx4 v[64:67], v5, {WS}, s62 offen offset:512
        buffer_store_dwordx4 v[68:71], v5, {WS}, s63 offen offset:512
        """)
        e(f"s_lshl_b32 s61, {sCGX}, 7\ns_add_u32 s61, s61, {WS_FLAG + 32768}")
        self.poll(32, sNONCE)
        self.stamp("s1")
        e(f"""
        v_lshlrev_b32 v5, 14, v4
        v_lshl_add_u32 v5, v3, 2, v5
        s_lshl_b32 s61, {sCGX}, 18
        s_lshl_b32 s62, {sTBX}, 8
        s_add_u32 s61, s61, s62
        s_lshl_b32 s62, {sW}, 6
        s_add_u32 s61, s61, s62
        s_add_u32 s61, s61, {WS_YP}
        """)
        for c in range(4):
            for h in range(2):
                e(f"s_add_u32 s62, s61, {c * 65536 + h * 8192}")
                e(f"buffer_load_dword a{240 + 2 * c + h}, v5, {WS}, s62 offen sc1")
        e("s_waitcnt vmcnt(0)")

    def round_body(self):
        e = self.e
        e.label("L_round")
        X = 16
        for i in range(16):
            e(f"v_accvgpr_read_b32 v{X + i}, a{224 + i}")
        for i in range(8):
            e(f"v_accvgpr_read_b32 v{48 + i}, a{240 + i}")
        e("v_accvgpr_read_b32 v8, a248\nv_accvgpr_read_b32 v9, a249")
        for c in range(4):
            for h in range(2):
                y = 48 + 2 * c + h
                x = X + 4 * c + 2 * h
                e(f"v_lshlrev_b32 v56, 16, v{y}\nv_and_b32 v57, 0xffff0000, v{y}")
                e(f"v_pk_fma_f32 v[58:59], {vr(x, 2)}, v[8:9], v[8:9] op_sel:[0,0,1] op_sel_hi:[1,0,1]")
                e(f"v_pk_fma_f32 {vr(x, 2)}, v[58:59], v[56:57], {vr(x, 2)}")
        for i in range(16):
            e(f"v_accvgpr_write_b32 a{224 + i}, v{X + i}")
        for s in range(2):
            for q in range(4):
                x = X + 8 * s + 2 * q
                e(f"v_cvt_pk_bf16_f32 v{40 + 4 * s + q}, v{x}, v{x + 1}")
        self.stats_partial(X, 60, 62)
        e(f"""
        s_lshl_b32 s61, {sTEAM}, 3
        s_lshl_b32 s62, {sTH}, 2
        s_add_u32 s61, s61, s62
        s_add_u32 s61, s61, {sW}
        s_lshl_b32 s61, s61, 14
        s_lshl_b32 s62, {sCGX}, 11
        s_add_u32 s61, s61, s62
        s_lshl_b32 s62, {sRND}, {self.xr}
        s_and_b32 s62, s62, 0x7fffffff
        s_add_u32 s61, s61, s62
        s_add_u32 s61, s61, {WS_XF}
        v_lshlrev_b32 v9, 3, v3
        s_lshl_b32 s62, {sTBX}, 12
        s_lshl_b32 s63, {sCGX}, 9
        s_add_u32 s62, s62, s63
        s_lshl_b32 s63, {sW}, 7
        s_add_u32 s62, s62, s63
        s_lshl_b32 s63, {sRND}, 18
        s_add_u32 s62, s62, s63
        s_add_u32 s62, s62, {WS_ST + 131072}
        """)
        self.dual([f"buffer_store_dwordx4 v[40:43], v1, {WS}, s61 offen",
                   f"buffer_store_dwordx4 v[44:47], v1, {WS}, s61 offen offset:1024",
                   f"buffer_store_dwordx2 v[60:61], v9, {WS}, s62 offen"])
        self.stamp("xst", self.prnd)
        e("s_waitcnt vmcnt(0)\ns_barrier")
        e(f"s_mul_i32 s65, {sRND}, {3 * 32768}\ns_add_u32 s65, s65, {WS_FLAG + 2 * 32768}")
        self.flag_set("s65", sNONCE, False)
        if self.stop_here("x1"):
            return True
        e(f"""
        s_lshr_b32 s69, {sR}, 4
        s_lshl_b32 s69, s69, 14
        s_lshl_b32 s61, {sG}, 7
        s_add_u32 s69, s69, s61
        s_add_u32 s61, s69, s65
        """)
        self.poll(16, sNONCE)
        self.stamp("s2", self.prnd)
        L = e.newlabel("L_noep")
        e(f"s_or_b32 s61, s2, {sRND}\ns_or_b32 s61, s61, {sW}\ns_cmp_eq_u32 s61, 0\ns_cbranch_scc0 {L}")
        e(f"v_mov_b32 v5, {sNONCE}\ns_mov_b64 exec, 1\nbuffer_store_dword v5, off, {WS}, 0 sc1\ns_mov_b64 exec, -1")
        e.label(L)
        self.gemm1()
        if self.stop_here("act"):
            return True
        self.gemm2()
        return False

    def gemm1(self):
        e = self.e
        e(f"""
        v_lshlrev_b32 v9, 3, v3
        s_lshl_b32 s61, {sTEAM}, 1
        s_lshr_b32 s62, {sW}, 1
        s_add_u32 s61, s61, s62
        s_lshl_b32 s61, s61, 12
        s_and_b32 s62, {sW}, 1
        s_lshl_b32 s62, s62, 8
        s_add_u32 s61, s61, s62
        s_lshl_b32 s62, {sRND}, 18
        s_add_u32 s61, s61, s62
        s_add_u32 s61, s61, {WS_ST + 131072}
        s_add_u32 s62, s61, 128
        """)
        for ee in range(2):
            for cg in range(8):
                e(f"buffer_load_dwordx2 {vr(144 + 16 * ee + 2 * cg, 2)}, v9, {WS}, s{61 + ee} offen offset:{512 * cg} sc1")
        e(f"""
        s_lshl_b32 s61, {sTEAM}, 3
        s_lshl_b32 s62, {sW}, 1
        s_add_u32 s61, s61, s62
        s_lshl_b32 s61, s61, 14
        s_lshl_b32 s62, {sRND}, {self.xr}
        s_and_b32 s62, s62, 0x7fffffff
        s_add_u32 s61, s61, s62
        s_add_u32 s66, s61, {WS_XF}
        s_add_u32 s67, s66, 16384
        """)
        for ks in range(16):
            if ks and ks % 4 == 0:
                e("s_add_u32 s66, s66, 4096\ns_add_u32 s67, s67, 4096")
            for ee in range(2):
                e(f"buffer_load_dwordx4 {vr(16 + 64 * ee + 4 * ks, 4)}, v1, {WS}, s{66 + ee} offen offset:{1024 * (ks % 4)}{self.ldsc}")
        e("""
        v_lshrrev_b32 v6, 2, v3
        v_lshl_add_u32 v6, v4, 2, v6
        v_mul_u32_u24 v6, 224, v6
        v_and_b32 v7, 3, v3
        v_lshl_add_u32 v6, v7, 3, v6
        v_add_u32 v7, 57344, v6
        """)
        self.stamp("g1iss", self.prnd)
        e("s_waitcnt vmcnt(32)")
        self.stamp("g1stw", self.prnd)
        self.stats_final(144, 8, LOG2E)
        self.stats_final(160, 10, LOG2E)
        e(f"v_mov_b32 v12, {hex(LN2)}\nv_mov_b32 v13, {hex(LN2)}")
        e(f"s_mov_b32 s76, 2.0\ns_mov_b32 s77, 2.0\ns_mov_b32 s78, {hex(M2LN2)}\ns_mov_b32 s79, {hex(M2LN2)}")
        AB, ACC = 144, 200

        def aread(ks, m_):
            base = "v6" if ks < 8 else "v7"
            o = (ks % 8) * 7168 + 32 * m_
            d = AB + 28 * (ks % 2) + 4 * m_
            e(f"ds_read_b64_tr_b16 {vr(d, 2)}, {base} offset:{o}")
            e(f"ds_read_b64_tr_b16 {vr(d + 2, 2)}, {base} offset:{o + 3584}")
        for m_ in range(7):
            aread(0, m_)
        extra = 0
        for ks in range(16):
            e(f"s_waitcnt vmcnt({2 * (15 - ks) + extra})")
            if ks in (0, 4, 8, 12):
                self.stamp(f"g1k{ks}", self.prnd)
            for m_ in range(7):
                if ks < 15:
                    e("s_waitcnt lgkmcnt(12)")
                else:
                    e(f"s_waitcnt lgkmcnt({2 * (6 - m_)})")
                A = vr(AB + 28 * (ks % 2) + 4 * m_, 4)
                for ee in range(2):
                    acc = vr(ACC + 8 * m_ + 4 * ee, 4)
                    C = "0" if ks == 0 else acc
                    e(f"v_mfma_f32_16x16x32_bf16 {acc}, {A}, {vr(16 + 64 * ee + 4 * ks, 4)}, {C}")
                if ks < 15:
                    aread(ks + 1, m_)
            if ks == 7:
                e(f"v_lshlrev_b32 v5, 4, v4\ns_lshl_b32 s61, s2, 10\ns_add_u32 s61, s61, {WS_TAB}")
                for m_ in range(7):
                    e(f"buffer_load_dwordx4 {vr(16 + 4 * m_, 4)}, v5, {WS}, s61 offen offset:{64 * m_} sc1")
                    e(f"buffer_load_dwordx4 {vr(80 + 4 * m_, 4)}, v5, {WS}, s61 offen offset:{512 + 64 * m_} sc1")
                extra = 14
        self.stamp("g1m", self.prnd)
        e(f"""
        s_lshl_b32 s61, {sTEAM}, 3
        s_lshl_b32 s62, {sW}, 1
        s_add_u32 s61, s61, s62
        s_lshl_b32 s61, s61, 4
        s_add_u32 s61, s61, {sM}
        s_mul_i32 s61, s61, 3584
        s_mul_i32 s62, {sRND}, {self.actr}
        s_add_u32 s61, s61, s62
        s_add_u32 s66, s61, {WS_ACT}
        s_add_u32 s67, s66, {16 * 3584}
        s_waitcnt vmcnt(0)
        """)
        for m_ in range(7):
            cs, bl = 16 + 4 * m_, 80 + 4 * m_
            units = [(ee, h) for ee in range(2) for h in range(2)]
            T = {u: 112 + 6 * i for i, u in enumerate(units)}
            for (ee, h) in units:
                t = T[(ee, h)]
                st = vr(8 + 2 * ee, 2)
                e(f"v_pk_fma_f32 {vr(t, 2)}, {vr(cs + 2 * h, 2)}, {st}, {vr(bl + 2 * h, 2)} op_sel:[0,1,0] op_sel_hi:[1,1,1]")
            for (ee, h) in units:
                t = T[(ee, h)]
                st = vr(8 + 2 * ee, 2)
                acc = vr(ACC + 8 * m_ + 4 * ee + 2 * h, 2)
                e(f"v_pk_fma_f32 {vr(t, 2)}, {acc}, {st}, {vr(t, 2)} op_sel:[0,0,0] op_sel_hi:[1,0,1]")
            for u in units:
                t = T[u]
                e(f"v_exp_f32 v{t + 2}, v{t}\nv_exp_f32 v{t + 3}, v{t + 1}")
            for u in units:
                t = T[u]
                e(f"v_pk_add_f32 {vr(t + 4, 2)}, {vr(t + 2, 2)}, s[76:77]")
            for u in units:
                t = T[u]
                e(f"v_pk_fma_f32 {vr(t + 2, 2)}, {vr(t + 2, 2)}, {vr(t + 4, 2)}, s[76:77]")
            for u in units:
                t = T[u]
                e(f"v_rcp_f32 v{t + 2}, v{t + 2}\nv_rcp_f32 v{t + 3}, v{t + 3}")
            for u in units:
                t = T[u]
                e(f"v_pk_fma_f32 {vr(t + 2, 2)}, {vr(t + 2, 2)}, s[78:79], v[12:13]")
            for u in units:
                t = T[u]
                e(f"v_pk_mul_f32 {vr(t, 2)}, {vr(t, 2)}, {vr(t + 2, 2)}")
            for (ee, h) in units:
                t = T[(ee, h)]
                d = 44 + 16 * ee + 2 * m_ + h
                e(f"v_cvt_pk_bf16_f32 v{d}, v{t}, v{t + 1}")
            if m_ % 2 == 1:
                u = m_ // 2
                self.dual([f"buffer_store_dwordx4 {vr(44 + 16 * ee + 4 * u, 4)}, v1, {WS}, s{66 + ee} offen offset:{1024 * u}"
                           for ee in range(2)])
            if m_ == 6:
                self.dual([f"buffer_store_dwordx2 {vr(44 + 16 * ee + 12, 2)}, v2, {WS}, s{66 + ee} offen offset:3072"
                           for ee in range(2)])
        self.stamp("g1epi", self.prnd)
        e("s_waitcnt vmcnt(0)\ns_barrier")
        e(f"s_mul_i32 s65, {sRND}, {3 * 32768}\ns_add_u32 s65, s65, {WS_FLAG + 3 * 32768}")
        self.flag_set("s65", sNONCE, False)
        self.stamp("actf", self.prnd)
        L = e.newlabel("L_notr")
        e(f"s_cmp_eq_u32 {sRND}, 0\ns_cbranch_scc0 {L}")
        e(f"""
        s_mul_i32 s61, {sW}, 12288
        s_add_u32 s61, s61, {L_S}
        v_and_b32 v5, 7, v0
        v_lshlrev_b32 v6, 1, v4
        v_xor_b32 v5, v5, v6
        v_lshlrev_b32 v5, 4, v5
        v_lshrrev_b32 v6, 3, v0
        v_lshl_add_u32 v5, v6, 7, v5
        v_add_u32 v5, s61, v5
        v_lshrrev_b32 v6, 2, v3
        v_lshl_add_u32 v7, v4, 2, v6
        v_lshlrev_b32 v7, 7, v7
        v_lshrrev_b32 v6, 1, v6
        v_lshl_add_u32 v6, v4, 1, v6
        v_and_b32 v6, 3, v6
        v_and_b32 v14, 3, v3
        v_lshrrev_b32 v15, 1, v14
        v_lshl_add_u32 v7, v15, 4, v7
        v_and_b32 v14, 1, v14
        v_lshl_add_u32 v7, v14, 3, v7
        v_add_u32 v7, s61, v7
        """)
        for c in range(4):
            e(f"v_xor_b32 v14, {c}, v6\nv_lshl_add_u32 v{16 + c}, v14, 5, v7")
        for k0 in range(0, 14, 3):
            ks_ = list(range(k0, min(k0 + 3, 14)))
            for sl, kk in enumerate(ks_):
                for qd in range(4):
                    e(f"ds_write_b128 v5, {ar(16 * kk + 4 * qd, 4)} offset:{sl * 4096 + qd * 1024}")
            e("s_waitcnt lgkmcnt(0)")
            for sl, kk in enumerate(ks_):
                for c in range(4):
                    for hh in range(2):
                        e(f"ds_read_b64_tr_b16 {ar(16 * kk + 4 * c + 2 * hh, 2)}, v{16 + c} offset:{sl * 4096 + hh * 2048}")
                e("s_waitcnt lgkmcnt(6)")
            e("s_waitcnt lgkmcnt(0)")
        e.label(L)

    def gemm2(self):
        e = self.e
        e("s_add_u32 s61, s69, s65")
        self.poll(16, sNONCE)
        self.stamp("s3", self.prnd)
        e(f"""
        s_lshl_b32 s61, {sTEAM}, 3
        s_lshl_b32 s62, {sTH}, 2
        s_add_u32 s61, s61, s62
        s_lshl_b32 s61, s61, 4
        s_lshl_b32 s62, {sW}, 2
        s_add_u32 s61, s61, s62
        s_mul_i32 s61, s61, 3584
        s_mul_i32 s62, {sRND}, {self.actr}
        s_add_u32 s61, s61, s62
        s_add_u32 s61, s61, {WS_ACT}
        """)
        for n in range(4):
            e(f"s_add_u32 s62, {sW}, {n}\ns_and_b32 s62, s62, 3\ns_mul_i32 s62, s62, {16 * 3584}\ns_add_u32 s{70 + n}, s61, s62")
        for i in range(4):
            e(f"v_add_u32 v{208 + i}, {3584 * i}, v1\nv_add_u32 v{212 + i}, {3584 * i}, v2")
        RB, ACC = 16, 144
        issued = []

        def bload(kk):
            P, u = kk // 7, kk % 7
            for n in range(4):
                d = RB + 16 * (kk % 8) + 4 * n
                if u < 3:
                    e(f"buffer_load_dwordx4 {vr(d, 4)}, v{208 + 2 * P}, {WS}, s{70 + n} offen offset:{1024 * u}{self.ldsc}")
                    issued.append(kk)
                elif u == 3:
                    e(f"buffer_load_dwordx2 {vr(d, 2)}, v{212 + 2 * P}, {WS}, s{70 + n} offen offset:3072{self.ldsc}")
                    e(f"buffer_load_dwordx2 {vr(d + 2, 2)}, v{213 + 2 * P}, {WS}, s{70 + n} offen offset:3072{self.ldsc}")
                    issued.extend([kk, kk])
                else:
                    e(f"buffer_load_dwordx4 {vr(d, 4)}, v{209 + 2 * P}, {WS}, s{70 + n} offen offset:{1024 * (u - 4)}{self.ldsc}")
                    issued.append(kk)
        for kk in range(8):
            bload(kk)
        for kk in range(14):
            younger = sum(1 for x in issued if x > kk)
            e(f"s_waitcnt vmcnt({younger})")
            if kk in (0, 4, 8, 12):
                self.stamp(f"g2k{kk}", self.prnd)
            for n in range(4):
                for c in range(4):
                    acc = vr(ACC + 16 * n + 4 * c, 4)
                    C = "0" if kk == 0 else acc
                    e(f"v_mfma_f32_16x16x32_bf16 {acc}, {ar(16 * kk + 4 * c, 4)}, {vr(RB + 16 * (kk % 8) + 4 * n, 4)}, {C}")
            if kk + 8 < 14:
                bload(kk + 8)
        self.stamp("g2m", self.prnd)
        for n in range(1, 4):
            e(f"s_add_u32 s61, {sW}, {n}\ns_and_b32 s61, s61, 3\ns_mul_i32 s61, s61, 12288")
            e(f"s_add_u32 s61, s61, {L_S + (n - 1) * 4096}\nv_add_u32 v{4 + n}, s61, v1")
        for n in range(1, 4):
            for c in range(4):
                e(f"ds_write_b128 v{4 + n}, {vr(ACC + 16 * n + 4 * c, 4)} offset:{1024 * c}")
        e(f"s_mul_i32 s61, {sW}, 12288\ns_add_u32 s61, s61, {L_S}\nv_add_u32 v8, s61, v1")
        X = 64
        for i in range(16):
            e(f"v_accvgpr_read_b32 v{X + i}, a{224 + i}")
        for i in range(0, 16, 2):
            e(f"v_pk_add_f32 {vr(X + i, 2)}, {vr(X + i, 2)}, {vr(ACC + i, 2)}")
        e("s_waitcnt lgkmcnt(0)\ns_barrier")
        for sl in range(3):
            for c in range(4):
                e(f"ds_read_b128 {vr(16 + 16 * sl + 4 * c, 4)}, v8 offset:{4096 * sl + 1024 * c}")
        for sl in range(3):
            e(f"s_waitcnt lgkmcnt({4 * (2 - sl)})")
            for i in range(0, 16, 2):
                e(f"v_pk_add_f32 {vr(X + i, 2)}, {vr(X + i, 2)}, {vr(16 + 16 * sl + i, 2)}")
        self.stamp("g2red", self.prnd)
        Lout = e.newlabel("L_out")
        e(f"s_cmp_eq_u32 {sRND}, 1\ns_cbranch_scc1 {Lout}")
        for i in range(16):
            e(f"v_accvgpr_write_b32 a{224 + i}, v{X + i}")
        self.stats_partial(X, 60, 62)
        e(f"""
        v_lshlrev_b32 v9, 3, v3
        s_lshl_b32 s62, {sTBX}, 12
        s_lshl_b32 s63, {sW}, 7
        s_add_u32 s62, s62, s63
        s_add_u32 s66, s62, {WS_ST + 2 * 131072}
        s_lshl_b32 s63, {sCGX}, 9
        s_add_u32 s62, s66, s63
        """)
        self.dual([f"buffer_store_dwordx2 v[60:61], v9, {WS}, s62 offen"])
        e("s_waitcnt vmcnt(0)\ns_barrier")
        e(f"s_mov_b32 s65, {WS_FLAG + 4 * 32768}")
        self.flag_set("s65", sNONCE, False)
        e(f"""
        s_lshr_b32 s61, {sR}, 3
        s_lshl_b32 s61, s61, 13
        s_lshl_b32 s62, {sG}, 7
        s_add_u32 s61, s61, s62
        s_add_u32 s61, s61, s65
        """)
        self.poll(8, sNONCE)
        self.stamp("s4")
        for cg in range(8):
            e(f"buffer_load_dwordx2 {vr(16 + 2 * cg, 2)}, v9, {WS}, s66 offen offset:{512 * cg} sc1")
        e("s_waitcnt vmcnt(0)")
        self.stats_final(16, 14)
        e("v_accvgpr_write_b32 a248, v14\nv_accvgpr_write_b32 a249, v15")
        e(f"s_mov_b32 {sRND}, 1\ns_nop 1\ns_branch L_round")
        e.label(Lout)
        for c in range(4):
            e(f"v_cvt_pk_bf16_f32 v{16 + 2 * c}, v{X + 4 * c}, v{X + 4 * c + 1}")
            e(f"v_cvt_pk_bf16_f32 v{17 + 2 * c}, v{X + 4 * c + 2}, v{X + 4 * c + 3}")
        e(f"""
        v_lshlrev_b32 v10, 10, v3
        v_lshl_add_u32 v10, v4, 3, v10
        s_lshl_b32 s61, {sTBX}, 16
        s_lshl_b32 s62, {sW}, 14
        s_add_u32 s61, s61, s62
        s_lshl_b32 s62, {sCGX}, 7
        s_add_u32 s61, s61, s62
        """)
        for c in range(4):
            e(f"buffer_store_dwordx2 {vr(16 + 2 * c, 2)}, v10, {OUT}, s61 offen offset:{32 * c}")

    def build(self):
        e = self.e
        self.prologue()
        self.p0()
        done = self.stop_here("p0")
        if not done:
            self.conv()
            done = self.stop_here("conv")
        if not done:
            self.window2()
            done = self.round_body()
        e.label("L_fin")
        if self.prof:
            e("s_waitcnt vmcnt(0)")
            self.stamp("end")
            L = e.newlabel("L_np")
            e(f"s_cmp_eq_u32 {sW}, 0\ns_cbranch_scc0 {L}")
            if "dbg" in self.opts:
                Ld = e.newlabel("L_nd")
                e(f"s_cmp_eq_u32 s2, 0\ns_cbranch_scc0 {Ld}")
                e("s_load_dwordx2 s[64:65], s[0:1], 88\ns_waitcnt lgkmcnt(0)")
                e("s_mov_b32 s68, s64\ns_and_b32 s69, s65, 0xffff\ns_mov_b32 s70, 256\ns_mov_b32 s71, 0x00020000\ns_mov_b64 exec, 1")
                for i in range(min(16, len(self.stamps))):
                    e(f"s_sub_u32 s62, s{80 + i}, s80\nv_mov_b32 v5, s62\nbuffer_store_dword v5, off, s[68:71], 0 offset:{4 * i}")
                e("s_mov_b64 exec, -1")
                e.label(Ld)
            e(f"s_lshl_b32 s61, s2, 7\ns_add_u32 s61, s61, {WS_PROF}\ns_mov_b64 exec, 1")
            e(f"v_mov_b32 v5, {sMODE}\nbuffer_store_dword v5, off, {WS}, s61 offset:124")
            for i in range(len(self.stamps)):
                e(f"v_mov_b32 v5, s{80 + i}\nbuffer_store_dword v5, off, {WS}, s61 offset:{4 * i}")
            e("s_mov_b64 exec, -1")
            e.label(L)
        e.label("L_end")
        e("s_endpgm")
        body = e.finish()
        hdr = open(REF).read().split("; Override launch")[0]
        return f"""{hdr}; Override launch geometry (harness parses the next line).
; @launch grid=(256,1,1) block=(256,1,1) lds={LDS_BYTES}
.amdgcn_target "amdgcn-amd-amdhsa--gfx950"
.text
.globl {KNAME}
.p2align 8
.type {KNAME},@function
{KNAME}:
{body}
.section .rodata,"a"
.p2align 6
.amdhsa_kernel {KNAME}
  .amdhsa_next_free_vgpr 512
  .amdhsa_next_free_sgpr 102
  .amdhsa_accum_offset 256
  .amdhsa_group_segment_fixed_size 0
  .amdhsa_kernarg_size 104
  .amdhsa_user_sgpr_count 2
  .amdhsa_user_sgpr_kernarg_segment_ptr 1
  .amdhsa_system_sgpr_workgroup_id_x 1
.end_amdhsa_kernel
"""


if __name__ == "__main__":
    import argparse
    ap = argparse.ArgumentParser()
    ap.add_argument("-o", default="interleave_layers__ssm_conv_h3__dense_activation_mish__prompt.s")
    ap.add_argument("--prof", default=None)
    ap.add_argument("--prnd", type=int, default=0)
    ap.add_argument("--clk", default="s_memrealtime")
    ap.add_argument("--stop", default=None)
    ap.add_argument("--opts", default="")
    a = ap.parse_args()
    prof = None if a.prof is None else (a.prof if a.prof == "all" else set(a.prof.split(",")))
    g = Gen(opts=[x for x in a.opts.split(',') if x], prof=prof, stop=a.stop, prnd=a.prnd, clk=a.clk)
    txt = g.build()
    open(a.o, "w").write(txt)
    if prof:
        open(a.o + ".names", "w").write(" ".join(g.stamps))
    print("lines", txt.count("\n"), "bytes", len(txt), "nops", g.e.nops)
```
